```python
import torch

def _softmax(x, axis=-1):
    return torch.softmax(x, dim=axis)
def _gelu(x):
    return torch.nn.functional.gelu(x, approximate="tanh")
def _silu(x):
    return torch.nn.functional.silu(x)
def _sigmoid(x):
    return torch.sigmoid(x)
def _layernorm(x, axis=-1, eps=1e-5):
    m = x.mean(dim=axis, keepdim=True)
    v = x.var(dim=axis, keepdim=True, unbiased=False)
    return (x - m) / torch.sqrt(v + eps)
def _scatter_add(tgt, idx, src, axis=0):
    return tgt.clone().index_add_(axis, idx, src)
def _segment_sum(src, seg, n):
    out = torch.zeros((n,) + src.shape[1:], dtype=src.dtype)
    return out.index_add_(0, seg, src)
def _pad(x, pw):
    flat = tuple(v for pair in reversed(pw) for v in pair)
    return torch.nn.functional.pad(x, flat)

kernel_name = 'interleave_layers__ssm_conv_h3__geglu_ffn__prompt'

def setup_inputs():

    _w = (lambda a: (lambda t: t.to(torch.bfloat16) if t.is_floating_point() else t)(torch.as_tensor(a)))
    def _A_setup():
        B, S, D = 1, 2048, 1024
        ks = 4
        return {
            "q": _w((lambda *s: torch.randn(*s, dtype=torch.bfloat16) * 0.05)(B, S, D)),
            "k": _w((lambda *s: torch.randn(*s, dtype=torch.bfloat16) * 0.8)(B, S, D)),
            "v": _w((lambda *s: torch.randn(*s, dtype=torch.bfloat16) * 0.8)(B, S, D)),
            "shift_k": _w((lambda *s: torch.randn(*s, dtype=torch.bfloat16) * 0.8)(D, ks) * 0.5),
            "ssm_k": _w((lambda *s: torch.randn(*s, dtype=torch.bfloat16) * 0.8)(D, S) * (1.0 / S ** 0.5)),
            "ssm_D": _w((lambda *s: torch.randn(*s, dtype=torch.bfloat16) * 0.8)(D)),
        }
    _A_in = _A_setup()

    def _B_setup():
        B, S, D, F = 1, 2048, 1024, 3584
        return {
            "x": _w((lambda *s: torch.randn(*s, dtype=torch.bfloat16) * 0.05)(B, S, D)),
            "w_gate": _w((lambda *s: torch.randn(*s, dtype=torch.bfloat16) * 0.05)(D, F)),
            "w_up": _w((lambda *s: torch.randn(*s, dtype=torch.bfloat16) * 0.05)(D, F)),
            "w_down": _w((lambda *s: torch.randn(*s, dtype=torch.bfloat16) * 0.05)(F, D)),
        }
    _B_in = _B_setup()

    return {
        "A_q": _A_in["q"],
        "A_k": _A_in["k"],
        "A_v": _A_in["v"],
        "A_shift_k": _A_in["shift_k"],
        "A_ssm_k": _A_in["ssm_k"],
        "A_ssm_D": _A_in["ssm_D"],
        "B_x": _B_in["x"],
        "B_w_gate": _B_in["w_gate"],
        "B_w_up": _B_in["w_up"],
        "B_w_down": _B_in["w_down"],
    }

def reference(A_q, A_k, A_v, A_shift_k, A_ssm_k, A_ssm_D, B_x, B_w_gate, B_w_up, B_w_down):
    def _A_ref(q, k, v, shift_k, ssm_k, ssm_D):
        B, S, D = q.shape
        ks = shift_k.shape[-1]
        k_pad = _pad(k, ((0, 0), (ks - 1, 0), (0, 0)))
        k_shift = torch.zeros_like(k)
        for t in range(ks):
            k_shift = k_shift + k_pad[:, t:t + S, :] * shift_k[:, ks - 1 - t][None, None, :]
        kv = k_shift * v
        L = 2 * S
        kv_pad = _pad(kv, ((0, 0), (0, S), (0, 0)))
        kf_pad = _pad(ssm_k, ((0, 0), (0, S)))
        kv_f = (lambda x, axes=(-2,-1): torch.fft.rfft2(x.float(), dim=axes))(kv_pad[:, None, :, :], axes=(1, 2))
        kf_f = (lambda x, axes=(-2,-1): torch.fft.rfft2(x.float(), dim=axes))(kf_pad[:, None, :], axes=(1, 2))
        kf_f = (lambda x, *d: x.permute(*d))(kf_f, 1, 2, 0)
        y_f = kv_f * kf_f[None, :, :, :]
        y = (lambda x, s, axes=(-2,-1): torch.fft.irfft2(x, s=s, dim=axes).to(torch.bfloat16))(y_f, (1, L), axes=(1, 2))[:, 0, :S, :]
        y = y + kv * ssm_D[None, None, :]
        return q * y

    def _B_ref(x, w_gate, w_up, w_down):
        return (_gelu(x @ w_gate) * (x @ w_up)) @ w_down

    x = A_q
    x = x + _A_ref(_layernorm(x, axis=-1), A_k, A_v, A_shift_k, A_ssm_k, A_ssm_D)
    x = x + _B_ref(_layernorm(x, axis=-1), B_w_gate, B_w_up, B_w_down)
    x = x + _A_ref(_layernorm(x, axis=-1), A_k, A_v, A_shift_k, A_ssm_k, A_ssm_D)
    x = x + _B_ref(_layernorm(x, axis=-1), B_w_gate, B_w_up, B_w_down)
    return x
```

```python
import sys, math

S, D, F = 2048, 1024, 3584
KA_Q, KA_K, KA_V, KA_SH, KA_SK, KA_SD, KA_BX, KA_WG, KA_WU, KA_WD, KA_OUT, KA_DBG, KA_WS = [8 * i for i in range(13)]
WS_UT = 0x0000000
WS_Y = 0x0400000
WS_X1 = 0x0800000
WS_XN = 0x0C00000
WS_H = 0x1000000
WS_X2 = 0x2000000
WS_X3 = 0x2400000
MB4 = 4 * 1024 * 1024
H_BYTES = S * F * 2
W_BYTES = D * F * 2


class Asm:
    def __init__(self):
        self.lines = []

    def __call__(self, s):
        for l in s.split("\n"):
            l = l.strip()
            if l:
                self.lines.append("    " + l if not l.endswith(":") else l)

    def text(self):
        return "\n".join(self.lines) + "\n"


def kernel_head(a, name):
    a.lines.append(f".globl {name}")
    a.lines.append(".p2align 8")
    a.lines.append(f".type {name},@function")
    a.lines.append(f"{name}:")


def kernel_desc(name, vgpr, sgpr, acc):
    return f""".section .rodata,"a"
.p2align 6
.amdhsa_kernel {name}
  .amdhsa_next_free_vgpr {vgpr}
  .amdhsa_next_free_sgpr {sgpr}
  .amdhsa_accum_offset {acc}
  .amdhsa_group_segment_fixed_size 0
  .amdhsa_kernarg_size 104
  .amdhsa_user_sgpr_count 2
  .amdhsa_user_sgpr_kernarg_segment_ptr 1
  .amdhsa_system_sgpr_workgroup_id_x 1
.end_amdhsa_kernel
.text
"""


def srd(a, r, base, off, nbytes):
    if off:
        a(f"s_add_u32 s{r}, s{base}, {off:#x}")
        a(f"s_addc_u32 s{r+1}, s{base+1}, 0")
    else:
        a(f"s_mov_b32 s{r}, s{base}")
        a(f"s_mov_b32 s{r+1}, s{base+1}")
    a(f"s_mov_b32 s{r+2}, {nbytes:#x}")
    a(f"s_mov_b32 s{r+3}, 0x00020000")


def vr(b, n=1, t="v"):
    return f"{t}{b}" if n == 1 else f"{t}[{b}:{b+n-1}]"


def gen_prep(name):
    a = Asm()
    kernel_head(a, name)
    a(f"""
    s_cmp_ge_u32 s2, 256
    s_cbranch_scc1 L_{name}_end
    s_load_dwordx4 s[4:7], s[0:1], {KA_K}
    s_load_dwordx2 s[8:9], s[0:1], {KA_SH}
    s_load_dwordx2 s[10:11], s[0:1], {KA_WS}
    s_and_b32 s28, s2, 7
    s_lshr_b32 s29, s2, 3
    s_and_b32 s30, s29, 1
    s_lshl_b32 s28, s28, 1
    s_add_u32 s28, s28, s30          ; db
    s_lshr_b32 s29, s29, 1           ; tb
    v_and_b32 v1, 7, v0              ; dg
    v_lshrrev_b32 v2, 3, v0          ; tg
    s_lshl_b32 s30, s29, 7           ; 128*tb
    v_lshlrev_b32 v2, 2, v2
    v_add_u32 v2, s30, v2            ; t0
    s_lshl_b32 s31, s28, 6
    v_lshlrev_b32 v1, 3, v1
    v_add_u32 v1, s31, v1            ; d0
    v_lshlrev_b32 v3, 11, v2
    v_lshl_add_u32 v3, v1, 1, v3     ; voffA = t0*2048 + d0*2
    v_add_u32 v4, 0xffffe800, v3     ; voffA - 6144
    v_mov_b32 v5, 0x40000000
    v_cmp_eq_u32 vcc, 0, v2
    s_nop 1
    v_cndmask_b32 v4, v4, v5, vcc    ; voffB
    v_lshlrev_b32 v5, 3, v1
    v_lshlrev_b32 v6, 12, v1
    v_lshlrev_b32 v7, 1, v2
    v_sub_u32 v6, v6, v7
    v_add_u32 v6, 4088, v6
    s_movk_i32 s33, 0x1000
    s_waitcnt lgkmcnt(0)
    """)
    srd(a, 12, 4, 0, MB4)
    srd(a, 16, 6, 0, MB4)
    srd(a, 20, 8, 0, 8192)
    srd(a, 24, 10, WS_UT, MB4)
    KR = 8
    VR = 36
    SR = 52
    T = 68
    K = 100
    O = 156
    V = 188
    for i in range(4):
        a(f"buffer_load_dwordx4 {vr(SR+4*i,4)}, v5, s[20:23], 0 offen offset:{16*i}")
    rows = [("v4", "0", 0), ("v4", "0", 2048), ("v4", "s33", 0), ("v3", "0", 0), ("v3", "0", 2048), ("v3", "s33", 0), ("v3", "s33", 2048)]
    for i, (vo, so, im) in enumerate(rows):
        a(f"buffer_load_dwordx4 {vr(KR+4*i,4)}, {vo}, s[12:15], {so} offen offset:{im}")
    for i, (vo, so, im) in enumerate(rows[3:]):
        a(f"buffer_load_dwordx4 {vr(VR+4*i,4)}, {vo}, s[16:19], {so} offen offset:{im}")
    a("s_mov_b32 s34, 0xffff0000")
    a("s_waitcnt vmcnt(11)")
    for e in range(8):
        a(f"v_lshlrev_b32 v{T+0+e}, 16, v{SR+2*e}")
        a(f"v_and_b32 v{T+8+e}, s34, v{SR+2*e}")
        a(f"v_lshlrev_b32 v{T+16+e}, 16, v{SR+2*e+1}")
        a(f"v_and_b32 v{T+24+e}, s34, v{SR+2*e+1}")
    for i in range(7):
        a(f"s_waitcnt vmcnt({10-i})")
        for p in range(4):
            a(f"v_lshlrev_b32 v{K+8*i+2*p}, 16, v{KR+4*i+p}")
            a(f"v_and_b32 v{K+8*i+2*p+1}, s34, v{KR+4*i+p}")
    for t in range(4):
        for j in range(4):
            for p in range(4):
                kk = K + 8 * (3 + t - j) + 2 * p
                if j == 0:
                    a(f"v_pk_mul_f32 {vr(O+8*t+2*p,2)}, {vr(kk,2)}, {vr(T+2*p,2)}")
                else:
                    a(f"v_pk_fma_f32 {vr(O+8*t+2*p,2)}, {vr(kk,2)}, {vr(T+8*j+2*p,2)}, {vr(O+8*t+2*p,2)}")
    for t in range(4):
        a(f"s_waitcnt vmcnt({3-t})")
        for p in range(4):
            a(f"v_lshlrev_b32 v{V+2*p}, 16, v{VR+4*t+p}")
            a(f"v_and_b32 v{V+2*p+1}, s34, v{VR+4*t+p}")
        for p in range(4):
            a(f"v_pk_mul_f32 {vr(O+8*t+2*p,2)}, {vr(O+8*t+2*p,2)}, {vr(V+2*p,2)}")
    for e in range(8):
        a(f"v_cvt_pk_bf16_f32 v{KR+2*e}, v{O+24+e}, v{O+16+e}")
        a(f"v_cvt_pk_bf16_f32 v{KR+2*e+1}, v{O+8+e}, v{O+e}")
    for e in range(8):
        a(f"buffer_store_dwordx2 {vr(KR+2*e,2)}, v6, s[24:27], 0 offen")
        if e < 7:
            a("v_add_u32 v6, 0x1000, v6")
    a(f"L_{name}_end:")
    a("s_endpgm")
    return a.text(), kernel_desc(name, 200, 48, 200), (256, 256, 0)


CSTR = 4160
UOFF = 4 * CSTR
WSTR = UOFF + 4608


def gen_conv(name):
    a = Asm()
    kernel_head(a, name)
    a(f"""
    s_cmp_ge_u32 s2, 256
    s_cbranch_scc1 L_{name}_end
    s_load_dwordx4 s[4:7], s[0:1], {KA_SK}
    s_load_dwordx2 s[10:11], s[0:1], {KA_WS}
    v_lshrrev_b32 v1, 6, v0
    v_and_b32 v0, 63, v0
    s_and_b32 s28, s2, 7
    s_lshr_b32 s29, s2, 3
    v_readfirstlane_b32 s30, v1          ; wave
    s_lshl_b32 s28, s28, 5
    s_add_u32 s28, s28, s29              ; wg'
    s_lshl_b32 s31, s28, 2
    s_add_u32 s31, s31, s30              ; d
    s_mul_i32 s32, s30, {WSTR}
    s_lshl_b32 s33, s31, 12              ; d*4096
    s_lshr_b32 s34, s31, 1
    s_lshl_b32 s34, s34, 2
    v_lshlrev_b32 v2, 4, v0              ; lane*16
    s_waitcnt lgkmcnt(0)
    s_load_dword s35, s[6:7], s34
    s_add_u32 s12, s4, s33
    s_addc_u32 s13, s5, 0
    s_movk_i32 s14, 0x1000
    s_mov_b32 s15, 0x00020000
    """)
    srd(a, 16, 10, WS_UT, MB4)
    srd(a, 20, 10, WS_Y, MB4)
    HR = 8
    a(f"s_add_u32 s36, s32, {UOFF}")
    a("s_mov_b32 m0, s36")
    for j in range(4):
        a(f"buffer_load_dwordx4 {vr(HR+12*j,4)}, v2, s[12:15], 0 offen offset:{1024*j}")
        a(f"buffer_load_dwordx2 {vr(HR+12*j+4,2)}, v2, s[12:15], 0 offen offset:{1024*j+16}")
    a("v_mov_b32 v3, 0x10000")
    a("v_cmp_eq_u32 vcc, 1, v0")
    a("s_nop 1")
    a("v_cndmask_b32 v3, v3, 0, vcc")
    SP = 56
    a(f"buffer_load_dwordx2 {vr(SP+4,2)}, v3, s[12:15], 0 offen")
    for j in range(4):
        a(f"buffer_load_dwordx4 v2, s[16:19], s33 offen offset:{1024*j} lds")
    for i in range(4):
        a(f"v_mov_b32 v{SP+i}, 0")
    a(f"v_lshl_add_u32 v4, v0, 3, s36")
    a(f"ds_write_b64 v4, {vr(SP,2)} offset:4096")
    a(f"v_add_u32 v5, s32, v2")
    a("v_and_b32 v6, 15, v0")
    a("v_lshrrev_b32 v7, 4, v0")
    a("v_add_u32 v70, 1, v6")
    a("v_and_b32 v71, 3, v70")
    a(f"v_mul_u32_u24 v71, {CSTR}, v71")
    a("v_lshrrev_b32 v70, 2, v70")
    a("v_lshlrev_b32 v70, 3, v70")
    a("v_add_u32 v70, v70, v71")
    a("v_lshl_add_u32 v70, v7, 4, v70")
    a("v_add_u32 v70, s32, v70")
    a("v_lshlrev_b32 v71, 5, v6")
    a("v_sub_u32 v71, 480, v71")
    a("v_lshl_add_u32 v71, v7, 4, v71")
    a("v_add_u32 v71, s36, v71")
    a("v_lshlrev_b32 v72, 5, v6")
    a("v_lshl_add_u32 v72, v7, 3, v72")
    a(f"v_sub_u32 v73, {4088 - 3584}, v72")
    a("v_add_u32 v73, s36, v73")
    a(f"s_mul_i32 s37, s30, {CSTR}")
    a("s_add_u32 s37, s37, s32")
    a("v_add_u32 v72, s37, v72")

    def build(b, waddr, off0):
        e = b + 6
        for i in range(5):
            a(f"v_alignbit_b32 v{e+i}, v{b+i+1}, v{b+i}, 16")
        a(f"ds_write_b128 {waddr}, {vr(b,4)} offset:{off0}")
        a(f"ds_write_b128 {waddr}, {vr(e,4)} offset:{off0+CSTR}")
        for i in range(4):
            a(f"v_mov_b32 v{74+i}, v{b+1+i}")
        for i in range(4):
            a(f"v_mov_b32 v{78+i}, v{e+1+i}")
        a(f"ds_write_b128 {waddr}, {vr(74,4)} offset:{off0+2*CSTR}")
        a(f"ds_write_b128 {waddr}, {vr(78,4)} offset:{off0+3*CSTR}")

    for j in range(4):
        a(f"s_waitcnt vmcnt({4 + 1 + 2*(3-j)})")
        build(HR + 12 * j, "v5", 32 + 1024 * j)
    a("s_waitcnt vmcnt(4)")
    a("s_mov_b64 exec, 3")
    build(SP, "v5", 0)
    a("s_mov_b64 exec, -1")
    a("s_waitcnt lgkmcnt(0)")
    a("s_and_b32 s38, s31, 1")
    a("s_lshl_b32 s39, s35, 16")
    a("s_and_b32 s35, s35, 0xffff0000")
    a("s_cmp_eq_u32 s38, 0")
    a("s_cselect_b32 s35, s39, s35")
    ACC = 84
    FA = [116, 180]
    for i in range(32):
        a(f"v_mov_b32 v{ACC+i}, 0")
    a("s_waitcnt vmcnt(0)")

    def reads(r):
        st = FA[r & 1]
        out = []
        def rdA(mu):
            m = 8 * mu + r
            out.append(f"ds_read_b64 {vr(st+4*mu,2)}, v70 offset:{64*m}")
            out.append(f"ds_read_b64 {vr(st+4*mu+2,2)}, v70 offset:{64*m+8}")
        def rdB(nu):
            q = 8 * nu - r
            out.append(f"ds_read_b128 {vr(st+32+4*nu,4)}, v71 offset:{3584-64*q}")
        rdA(0)
        for nu in range(8):
            rdB(nu)
        for mu in range(1, 8):
            rdA(mu)
        return out

    for l in reads(0):
        a(l)
    for r in range(8):
        st = FA[r & 1]
        nxt = reads(r + 1) if r < 7 else [f"ds_read_b64 {vr(FA[0]+2*n,2)}, v73 offset:{512*(7-n)}" for n in range(8)]
        a("s_waitcnt lgkmcnt(0)")
        i = 0
        for mu in range(8):
            for n in range(mu, 8):
                a(f"v_mfma_f32_16x16x32_bf16 {vr(ACC+4*n,4)}, {vr(st+4*mu,4)}, {vr(st+32+4*(n-mu),4)}, {vr(ACC+4*n,4)}")
                if i < len(nxt):
                    a(nxt[i])
                i += 1
    a("s_mov_b32 s34, 0xffff0000")
    a("s_waitcnt lgkmcnt(0)")
    TMP = FA[1]
    for n in range(8):
        u = FA[0] + 2 * n
        a(f"v_and_b32 v{TMP+4*n+0}, s34, v{u+1}")
        a(f"v_lshlrev_b32 v{TMP+4*n+1}, 16, v{u+1}")
        a(f"v_and_b32 v{TMP+4*n+2}, s34, v{u}")
        a(f"v_lshlrev_b32 v{TMP+4*n+3}, 16, v{u}")
    for n in range(8):
        for r in range(4):
            a(f"v_fma_f32 v{ACC+4*n+r}, v{TMP+4*n+r}, s35, v{ACC+4*n+r}")
        a(f"v_cvt_pk_bf16_f32 v{TMP+4*n}, v{ACC+4*n}, v{ACC+4*n+1}")
        a(f"v_cvt_pk_bf16_f32 v{TMP+4*n+1}, v{ACC+4*n+2}, v{ACC+4*n+3}")
        a(f"ds_write_b64 v72, {vr(TMP+4*n,2)} offset:{512*n}")
    a("v_bfe_u32 v8, v0, 2, 2")
    a(f"v_mul_u32_u24 v8, {WSTR+CSTR}, v8")
    a("v_lshl_add_u32 v8, v7, 5, v8")
    a("v_and_b32 v9, 3, v0")
    a("v_lshl_add_u32 v8, v9, 3, v8")
    a("s_lshl_b32 s38, s30, 10")
    a("v_add_u32 v8, s38, v8")
    a("v_lshrrev_b32 v9, 3, v0")
    a("v_lshlrev_b32 v9, 14, v9")
    a("v_and_b32 v10, 7, v0")
    a("v_lshl_add_u32 v9, v10, 4, v9")
    a("s_lshl_b32 s38, s30, 20")
    a("s_lshr_b32 s39, s28, 1")
    a("s_lshl_b32 s39, s39, 7")
    a("s_add_u32 s38, s38, s39")
    a("s_and_b32 s39, s28, 1")
    a("s_lshl_b32 s39, s39, 3")
    a("s_add_u32 s38, s38, s39")
    a("v_add_u32 v9, s38, v9")
    a("s_waitcnt lgkmcnt(0)")
    a("s_barrier")
    for e in range(8):
        a(f"ds_read_b64_tr_b16 {vr(12+2*e,2)}, v8 offset:{128*e}")
    for e in range(8):
        a(f"s_waitcnt lgkmcnt({7-e})")
        a(f"buffer_store_dwordx2 {vr(12+2*e,2)}, v9, s[20:23], 0 offen")
        if e < 7:
            a("v_add_u32 v9, 0x20000, v9")
    a(f"L_{name}_end:")
    a("s_endpgm")
    return a.text(), kernel_desc(name, 248, 48, 248), (256, 256, 4 * WSTR)


def gen_ln(name, src_is_q, ws_in, ws_out):
    a = Asm()
    kernel_head(a, name)
    a(f"""
    s_cmp_ge_u32 s2, 256
    s_cbranch_scc1 L_{name}_end
    s_load_dwordx2 s[4:5], s[0:1], {KA_Q}
    s_load_dwordx2 s[10:11], s[0:1], {KA_WS}
    v_and_b32 v1, 7, v0              ; tok
    v_lshrrev_b32 v2, 3, v0          ; c (i=0) 0..63
    s_lshl_b32 s28, s2, 14           ; tb*16384
    v_lshlrev_b32 v3, 11, v1
    v_lshl_add_u32 v3, v2, 4, v3
    v_add_u32 v3, s28, v3
    v_lshlrev_b32 v4, 4, v0
    v_add_u32 v4, s28, v4            ; y offset ; i=1: +8192
    s_lshr_b32 s29, s2, 3
    s_lshl_b32 s29, s29, 17
    s_bfe_u32 s30, s2, 0x20001
    s_lshl_b32 s30, s30, 10
    s_add_u32 s29, s29, s30
    s_and_b32 s30, s2, 1
    s_lshl_b32 s30, s30, 7
    s_add_u32 s29, s29, s30
    v_lshrrev_b32 v5, 2, v2
    v_lshlrev_b32 v5, 12, v5
    v_and_b32 v6, 3, v2
    v_lshl_add_u32 v5, v6, 8, v5
    v_lshl_add_u32 v5, v1, 4, v5
    v_add_u32 v5, s29, v5            ; i=1: + 16*4096
    v_lshrrev_b32 v6, 6, v0
    v_lshlrev_b32 v6, 3, v6
    v_lshl_add_u32 v6, v1, 6, v6
    v_lshlrev_b32 v7, 6, v1
    s_movk_i32 s33, 0x2000
    s_mov_b32 s36, 0x10000
    s_waitcnt lgkmcnt(0)
    """)
    if src_is_q:
        srd(a, 12, 4, 0, MB4)
    else:
        srd(a, 12, 10, ws_in, MB4)
    srd(a, 16, 10, WS_Y, MB4)
    srd(a, 20, 10, ws_out, MB4)
    srd(a, 24, 10, WS_XN, MB4)
    XR, YR, X, Y = 8, 16, 24, 40
    a(f"buffer_load_dwordx4 {vr(XR,4)}, v3, s[12:15], 0 offen")
    a(f"buffer_load_dwordx4 {vr(XR+4,4)}, v3, s[12:15], 0 offen offset:1024")
    a(f"buffer_load_dwordx4 {vr(YR,4)}, v4, s[16:19], 0 offen")
    a(f"buffer_load_dwordx4 {vr(YR+4,4)}, v4, s[16:19], s33 offen")
    a("s_mov_b32 s34, 0xffff0000")
    a("s_mov_b32 s35, 0x3a800000")
    a("s_mov_b32 s37, 0x3727c5ac")

    def stats(lds_off):
        a(f"v_pk_add_f32 v[56:57], {vr(X,2)}, {vr(X+2,2)}")
        a(f"v_pk_mul_f32 v[58:59], {vr(X,2)}, {vr(X,2)}")
        a(f"v_pk_fma_f32 v[58:59], {vr(X+2,2)}, {vr(X+2,2)}, v[58:59]")
        for p in range(2, 8):
            a(f"v_pk_add_f32 v[56:57], v[56:57], {vr(X+2*p,2)}")
            a(f"v_pk_fma_f32 v[58:59], {vr(X+2*p,2)}, {vr(X+2*p,2)}, v[58:59]")
        a("v_add_f32 v56, v56, v57")
        a("v_add_f32 v57, v58, v59")
        a("s_nop 1")
        a("v_add_f32_dpp v56, v56, v56 row_ror:8 row_mask:0xf bank_mask:0xf")
        a("v_add_f32_dpp v57, v57, v57 row_ror:8 row_mask:0xf bank_mask:0xf")
        for sw in ("v_permlane16_swap_b32", "v_permlane32_swap_b32"):
            a("v_mov_b32 v58, v56")
            a("v_mov_b32 v59, v57")
            a("s_nop 1")
            a(f"{sw} v56, v58")
            a(f"{sw} v57, v59")
            a("s_nop 1")
            a("v_pk_add_f32 v[56:57], v[56:57], v[58:59]")
        a(f"ds_write_b64 v6, v[56:57] offset:{lds_off}")
        a("s_waitcnt lgkmcnt(0)")
        a("s_barrier")
        for i in range(4):
            a(f"ds_read_b128 {vr(60+4*i,4)}, v7 offset:{lds_off+16*i}")
        a("s_waitcnt lgkmcnt(0)")
        a("v_pk_add_f32 v[60:61], v[60:61], v[62:63]")
        a("v_pk_add_f32 v[64:65], v[64:65], v[66:67]")
        a("v_pk_add_f32 v[68:69], v[68:69], v[70:71]")
        a("v_pk_add_f32 v[72:73], v[72:73], v[74:75]")
        a("v_pk_add_f32 v[60:61], v[60:61], v[64:65]")
        a("v_pk_add_f32 v[68:69], v[68:69], v[72:73]")
        a("v_pk_add_f32 v[60:61], v[60:61], v[68:69]")
        a("v_mul_f32 v58, s35, v60")
        a("v_mul_f32 v61, s35, v61")
        a("v_fma_f32 v61, -v58, v58, v61")
        a("v_max_f32 v61, 0, v61")
        a("v_add_f32 v61, s37, v61")
        a("v_rsq_f32 v60, v61")
        a("s_nop 0")
        a("v_mul_f32 v62, v58, v60")

    a("s_waitcnt vmcnt(2)")
    for p in range(8):
        a(f"v_lshlrev_b32 v{X+2*p}, 16, v{XR+p}")
        a(f"v_and_b32 v{X+2*p+1}, s34, v{XR+p}")
    stats(0)
    a("s_waitcnt vmcnt(0)")
    for p in range(8):
        a(f"v_lshlrev_b32 v{Y+2*p}, 16, v{YR+p}")
        a(f"v_and_b32 v{Y+2*p+1}, s34, v{YR+p}")
    for p in range(8):
        a(f"v_pk_fma_f32 v[64:65], {vr(X+2*p,2)}, v[60:61], v[62:63] op_sel_hi:[1,0,0] neg_lo:[0,0,1] neg_hi:[0,0,1]")
        a(f"v_pk_fma_f32 {vr(X+2*p,2)}, v[64:65], {vr(Y+2*p,2)}, {vr(X+2*p,2)}")
    for p in range(8):
        a(f"v_cvt_pk_bf16_f32 v{XR+p}, v{X+2*p}, v{X+2*p+1}")
    a(f"buffer_store_dwordx4 {vr(XR,4)}, v3, s[20:23], 0 offen")
    a(f"buffer_store_dwordx4 {vr(XR+4,4)}, v3, s[20:23], 0 offen offset:1024")
    stats(512)
    for p in range(8):
        a(f"v_pk_fma_f32 {vr(X+2*p,2)}, {vr(X+2*p,2)}, v[60:61], v[62:63] op_sel_hi:[1,0,0] neg_lo:[0,0,1] neg_hi:[0,0,1]")
    for p in range(8):
        a(f"v_cvt_pk_bf16_f32 v{YR+p}, v{X+2*p}, v{X+2*p+1}")
    a(f"buffer_store_dwordx4 {vr(YR,4)}, v5, s[24:27], 0 offen")
    a(f"buffer_store_dwordx4 {vr(YR+4,4)}, v5, s[24:27], s36 offen")
    a(f"L_{name}_end:")
    a("s_endpgm")
    return a.text(), kernel_desc(name, 80, 48, 80), (256, 512, 1024)


class Op:
    def __init__(self, text, vm=None, need=None, site=None):
        self.text, self.vm, self.need, self.site = text, vm, need, site


def resolve_vm(stream):
    issued = []
    res = {}
    for op in stream:
        if op.need is not None:
            last = -1
            for t in op.need:
                idx = [i for i, x in enumerate(issued) if x == t]
                assert idx, f"tag {t} never issued"
                last = max(last, idx[-1])
            n = len(issued) - 1 - last
            res[op.site] = min(res.get(op.site, 63), n)
        if op.vm is not None:
            issued.append(op.vm)
    return res


def emit(a, ops, vmn):
    for op in ops:
        if op.need is not None:
            a(f"s_waitcnt vmcnt({vmn[op.site]})")
        else:
            a(op.text)


def weave(mfmas, fill):
    out = []
    for i, m in enumerate(mfmas):
        out += fill.get(i, [])
        out.append(m)
    out += fill.get(len(mfmas), [])
    return out


STG = 28672


def gen_g1(name):
    a = Asm()
    kernel_head(a, name)
    ACC = 32
    XA = 0
    WA = 128
    LA = 4
    VW = 8
    VX = 15
    VL = [16, 17]
    a(f"""
    s_cmp_ge_u32 s2, 256
    s_cbranch_scc1 L_{name}_end
    s_load_dwordx4 s[16:19], s[0:1], {KA_WG}
    s_load_dwordx2 s[20:21], s[0:1], {KA_WS}
    v_lshrrev_b32 v1, 6, v0
    v_and_b32 v0, 63, v0
    s_and_b32 s28, s2, 7
    s_lshr_b32 s29, s2, 3
    v_readfirstlane_b32 s30, v1          ; wave
    s_and_b32 s31, s28, 1
    s_lshl_b32 s31, s31, 2
    s_and_b32 s32, s29, 3
    s_add_u32 s31, s31, s32              ; rb
    s_lshr_b32 s32, s28, 1
    s_lshl_b32 s32, s32, 3
    s_lshr_b32 s33, s29, 2
    s_add_u32 s32, s32, s33              ; cb
    s_and_b32 s33, s30, 1
    s_mul_i32 s33, s33, 448
    s_mul_i32 s34, s32, 224
    s_movk_i32 s35, 4682
    """)
    for j in range(7):
        a(f"v_add_u32 v2, {64*j}, v0")
        a("v_add_u32 v2, s33, v2")
        a("v_mul_lo_u32 v3, v2, s35")
        a("v_lshrrev_b32 v3, 16, v3")
        a("v_mul_u32_u24 v4, 14, v3")
        a("v_sub_u32 v4, v2, v4")
        a("v_and_b32 v5, 0x33, v3")
        a("v_and_b32 v6, 4, v3")
        a("v_lshl_or_b32 v5, v6, 1, v5")
        a("v_and_b32 v6, 8, v3")
        a("v_lshrrev_b32 v6, 1, v6")
        a("v_or_b32 v5, v5, v6")
        a("v_mul_u32_u24 v5, 7168, v5")
        a("v_lshl_add_u32 v5, v4, 4, v5")
        a(f"v_add_u32 v5, s34, v5")
        if j & 3:
            a(f"v_subrev_u32 v{VW+j}, {1024*(j&3)}, v5")
        else:
            a(f"v_mov_b32 v{VW+j}, v5")
    a(f"v_lshlrev_b32 v{VX}, 4, v0")
    a("v_bfe_u32 v2, v0, 2, 3")
    a("v_lshrrev_b32 v3, 5, v0")
    a("v_lshl_add_u32 v2, v3, 4, v2")
    a("v_mul_u32_u24 v2, 224, v2")
    a("v_and_b32 v3, 3, v0")
    a(f"v_lshl_add_u32 v{VL[0]}, v3, 3, v2")
    a(f"v_add_u32 v{VL[1]}, {2*STG}, v{VL[0]}")
    a("s_waitcnt lgkmcnt(0)")
    a("s_cmp_ge_u32 s30, 2")
    a("s_cselect_b32 s4, s18, s16")
    a("s_cselect_b32 s5, s19, s17")
    a(f"s_mov_b32 s6, {W_BYTES}")
    a("s_mov_b32 s7, 0x00020000")
    srd(a, 8, 20, WS_XN, MB4)
    srd(a, 12, 20, WS_H, H_BYTES)
    a("s_mov_b32 s36, 0")
    a("s_lshl_b32 s37, s31, 2")
    a("s_add_u32 s37, s37, s30")
    a("s_lshl_b32 s37, s37, 17")
    a("s_mul_i32 s38, s30, 7168")

    def w_dma(s):
        slot = s % 4
        g = []
        for j in range(7):
            grp = []
            if j in (0, 4):
                grp.append(Op(f"s_add_u32 m0, s38, {slot*STG + (4096 if j == 4 else 0)}"))
                grp.append(Op("s_nop 0"))
            grp.append(Op(f"buffer_load_dwordx4 v{VW+j}, s[4:7], s36 offen offset:{1024*(j&3)} lds", vm=("W", s)))
            if j == 6:
                grp.append(Op(f"s_add_u32 s36, s36, {64*7168}"))
            g.append(grp)
        return g

    def x_load(k):
        g = []
        for t in range(4):
            grp = [Op(f"buffer_load_dwordx4 {vr(XA+16*(k%8)+4*t,4,'a')}, v{VX}, s[8:11], s37 offen offset:{1024*t}", vm=("X", k))]
            if t == 3:
                grp.append(Op("s_add_u32 s37, s37, 4096"))
            g.append(grp)
        return g

    def w_read(fi):
        s, rem = divmod(fi, 28)
        kk, j = divmod(rem, 14)
        slot = s % 4
        base = (slot & 1) * STG + (j & 1) * 14336 + 32 * kk * 224 + 32 * (j >> 1)
        reg = WA + 4 * (fi % 8)
        return [Op(f"ds_read_b64_tr_b16 {vr(reg+2*h,2,'a')}, v{VL[slot>>1]} offset:{base + 8*h*224}") for h in range(2)]

    NST = 16

    def stage(s):
        mf = []
        fill = {}
        def put(i, ops):
            fill.setdefault(i, []).extend(ops)
        for kk in range(2):
            k = 2 * s + kk
            for j in range(14):
                fi = s * 28 + kk * 14 + j
                i0 = len(mf)
                last = fi + LA >= NST * 28
                nrem = min(LA, NST * 28 - fi) - 1
                put(i0, [Op(f"s_waitcnt lgkmcnt({2*nrem})")])
                if not last:
                    rd = w_read(fi + LA)
                    put(i0 + 1, [rd[0]])
                    put(i0 + 2, [rd[1]])
                for t in range(4):
                    acc = ACC + 16 * j + 4 * t
                    mf.append(Op(f"v_mfma_f32_16x16x32_bf16 {vr(acc,4)}, {vr(WA+4*(fi%8),4,'a')}, {vr(XA+16*(k%8)+4*t,4,'a')}, {vr(acc,4)}"))
            if k + 7 < 2 * NST:
                for t, grp in enumerate(x_load(k + 7)):
                    put(kk * 56 + 4 * (1 + t) + 3, grp)
        if s + 1 < NST:
            need = [("W", s + 1), ("X", 2 * s + 2), ("X", 2 * s + 3)]
            put(4 * 20, [Op("", need=need, site=("B", s if s >= NST - 4 else s % 4)), Op("s_barrier")])
            if s + 3 < NST:
                for j, grp in enumerate(w_dma(s + 3)):
                    put(4 * (21 + j) - 1, grp)
        return weave(mf, fill)

    pro = []
    def flat(gs):
        return [o for g in gs for o in g]
    pro += flat(w_dma(0)) + flat(x_load(0)) + flat(x_load(1)) + flat(w_dma(1)) + flat(x_load(2)) + flat(x_load(3))
    pro += flat(w_dma(2)) + flat(x_load(4)) + flat(x_load(5)) + flat(x_load(6))
    pro += [Op(f"v_mov_b32 v{ACC+i}, 0") for i in range(224)]
    pro += [Op("s_mov_b32 s39, 0")]
    pro += [Op("", need=[("W", 0), ("X", 0), ("X", 1)], site="P"), Op("s_barrier")]
    for fi in range(LA):
        pro += w_read(fi)
    stages = [stage(s) for s in range(NST)]
    vmn = resolve_vm(pro + [o for st in stages for o in st])
    emit(a, pro, vmn)
    a(f"L_{name}_loop:")
    for s in range(4):
        emit(a, stages[s], vmn)
    a("s_add_u32 s39, s39, 1")
    a("s_cmp_lt_u32 s39, 3")
    a(f"s_cbranch_scc1 L_{name}_loop")
    for s in range(12, 16):
        emit(a, stages[s], vmn)
    a("s_lshl_b32 s40, s31, 3")
    a("s_lshl_b32 s41, s30, 1")
    a("s_add_u32 s40, s40, s41")
    a("s_mul_i32 s40, s40, 229376")
    a("s_lshr_b32 s41, s32, 1")
    a("s_mul_i32 s41, s41, 14336")
    a("s_add_u32 s40, s40, s41")
    a("s_and_b32 s42, s32, 1")
    a("s_lshl_b32 s43, s42, 3")
    a("s_add_u32 s41, s40, s43")
    a("s_add_u32 s41, s41, 12288")
    a("s_add_u32 s47, s41, 229376")
    a("s_mul_i32 s42, s42, 6144")
    a("s_add_u32 s40, s40, s42")
    a("s_add_u32 s44, s40, 4096")
    a("s_add_u32 s45, s40, 229376")
    a("s_add_u32 s46, s44, 229376")
    c0 = -2.0 * math.sqrt(2.0 / math.pi) * math.log2(math.e)
    c1 = c0 * 0.044715
    import struct
    f2u = lambda x: struct.unpack("<I", struct.pack("<f", x))[0]
    a(f"s_mov_b32 s48, {f2u(c1):#x}")
    a(f"v_mov_b32 v18, {f2u(c0):#x}")
    a("s_nop 4")

    def gelu4(G, U, T, out):
        for p in (0, 2):
            a(f"v_pk_mul_f32 {vr(T+p,2)}, {vr(G+p,2)}, {vr(G+p,2)}")
        for p in (0, 2):
            a(f"v_pk_fma_f32 {vr(T+p,2)}, {vr(T+p,2)}, s[48:49], v[18:19] op_sel_hi:[1,0,0]")
        for p in (0, 2):
            a(f"v_pk_mul_f32 {vr(T+p,2)}, {vr(T+p,2)}, {vr(G+p,2)}")
        for r in range(4):
            a(f"v_exp_f32 v{T+r}, v{T+r}")
        for p in (0, 2):
            a(f"v_pk_mul_f32 {vr(G+p,2)}, {vr(G+p,2)}, {vr(U+p,2)}")
        for p in (0, 2):
            a(f"v_pk_add_f32 {vr(T+p,2)}, {vr(T+p,2)}, 1.0 op_sel_hi:[1,0]")
        for r in range(4):
            a(f"v_rcp_f32 v{T+r}, v{T+r}")
        a("s_nop 0")
        for p in (0, 2):
            a(f"v_pk_mul_f32 {vr(G+p,2)}, {vr(G+p,2)}, {vr(T+p,2)}")
        a(f"v_cvt_pk_bf16_f32 v{out}, v{G}, v{G+1}")
        a(f"v_cvt_pk_bf16_f32 v{out+1}, v{G+2}, v{G+3}")

    cnt = 0
    for i in range(4):
        for tt in range(4):
            ob = 20 + 4 * (cnt & 1)
            cnt += 1
            if i < 3:
                for hf in range(2):
                    ti = 2 * i + hf
                    gelu4(ACC + 16 * (2 * ti) + 4 * tt, ACC + 16 * (2 * ti + 1) + 4 * tt, 28, ob + 2 * hf)
                so = [["s40", "s40", "s44"], ["s45", "s45", "s46"]][tt >> 1][i]
                im = (tt & 1) * 1024 + (2048 if i == 1 else 0)
                a(f"buffer_store_dwordx4 {vr(ob,4)}, v{VX}, s[12:15], {so} offen offset:{im}")
            else:
                gelu4(ACC + 16 * 12 + 4 * tt, ACC + 16 * 13 + 4 * tt, 28, ob)
                so = ["s41", "s47"][tt >> 1]
                a(f"buffer_store_dwordx2 {vr(ob,2)}, v{VX}, s[12:15], {so} offen offset:{(tt&1)*1024}")
    a(f"L_{name}_end:")
    a("s_endpgm")
    return a.text(), kernel_desc(name, 256 + 160, 56, 256), (256, 256, 4 * STG)


def gen_g2(name, ws_res, out_is_out, ws_out):
    a = Asm()
    kernel_head(a, name)
    ACC = 32
    HA = 64
    WA = 176
    RES = 208
    LA = 6
    VW = 8
    VX = 15
    VL = 16
    a(f"""
    s_cmp_ge_u32 s2, 256
    s_cbranch_scc1 L_{name}_end
    s_load_dwordx4 s[16:19], s[0:1], {KA_WD}
    s_load_dwordx2 s[20:21], s[0:1], {KA_WS}
    v_lshrrev_b32 v1, 6, v0
    v_and_b32 v0, 63, v0
    s_and_b32 s28, s2, 7
    s_lshr_b32 s29, s2, 3
    v_readfirstlane_b32 s30, v1          ; wave
    s_and_b32 s31, s28, 3
    s_lshl_b32 s31, s31, 2
    s_and_b32 s32, s29, 3
    s_add_u32 s31, s31, s32
    s_lshr_b32 s32, s28, 2
    s_lshl_b32 s32, s32, 3
    s_lshr_b32 s33, s29, 2
    s_add_u32 s32, s32, s33
    s_mul_i32 s33, s30, {56*2048}
    s_lshl_b32 s34, s32, 7
    s_add_u32 s33, s33, s34
    v_lshrrev_b32 v2, 3, v0
    v_lshlrev_b32 v2, 11, v2
    v_bfe_u32 v3, v0, 4, 2
    v_lshlrev_b32 v3, 1, v3
    v_and_b32 v4, 7, v0
    v_xor_b32 v3, v3, v4
    v_lshl_add_u32 v2, v3, 4, v2
    v_add_u32 v2, s33, v2
    """)
    for j in range(7):
        a(f"v_add_u32 v{VW+j}, {16384*j - 1024*(j&3)}, v2")
    a(f"v_lshlrev_b32 v{VX}, 4, v0")
    a("v_lshrrev_b32 v2, 2, v0")
    a("v_lshlrev_b32 v2, 7, v2")
    a("v_and_b32 v3, 1, v0")
    a("v_lshl_add_u32 v2, v3, 3, v2")
    a("v_bfe_u32 v3, v0, 3, 2")
    a("v_lshlrev_b32 v3, 1, v3")
    a("v_bfe_u32 v4, v0, 1, 1")
    a("v_or_b32 v3, v3, v4")
    for i in range(4):
        a(f"v_xor_b32 v4, {2*i}, v3")
        a(f"v_lshl_add_u32 v{VL+i}, v4, 4, v2")
        a(f"v_add_u32 v{VL+4+i}, {2*STG}, v{VL+i}")
    a("s_lshl_b32 s33, s31, 2")
    a("s_add_u32 s33, s33, s30")
    a("s_lshl_b32 s35, s33, 16")
    a("s_add_u32 s35, s35, s34")
    a("v_and_b32 v2, 15, v0")
    a("v_lshlrev_b32 v2, 11, v2")
    a("v_add_u32 v2, s35, v2")
    a("v_lshrrev_b32 v3, 4, v0")
    a("v_lshl_add_u32 v24, v3, 3, v2")
    a("v_and_b32 v4, 1, v3")
    a("v_lshlrev_b32 v4, 1, v4")
    a("v_lshrrev_b32 v3, 1, v3")
    a("v_or_b32 v3, v3, v4")
    a("v_lshl_add_u32 v25, v3, 4, v2")
    a("s_waitcnt lgkmcnt(0)")
    srd(a, 4, 16, 0, W_BYTES)
    srd(a, 8, 20, WS_H, H_BYTES)
    if out_is_out:
        srd(a, 12, 18, 0, MB4)
    else:
        srd(a, 12, 20, ws_out, MB4)
    srd(a, 24, 20, ws_res, MB4)
    a("s_mov_b32 s36, 0")
    a("s_mul_i32 s37, s33, 229376")
    a("s_mul_i32 s38, s30, 7168")
    a("s_mov_b32 s40, 0x8000")

    def w_dma(s):
        slot = s % 4
        g = []
        for j in range(7):
            grp = []
            if j in (0, 4):
                grp.append(Op(f"s_add_u32 m0, s38, {slot*STG + (4096 if j == 4 else 0)}"))
                grp.append(Op("s_nop 0"))
            grp.append(Op(f"buffer_load_dwordx4 v{VW+j}, s[4:7], s36 offen offset:{1024*(j&3)} lds", vm=("W", s)))
            if j == 6:
                grp.append(Op(f"s_add_u32 s36, s36, {224*2048}"))
            g.append(grp)
        return g

    def h_load(k):
        g = []
        for t in range(2):
            grp = [Op(f"buffer_load_dwordx4 {vr(HA+8*(k%14)+4*t,4)}, v{VX}, s[8:11], s37 offen offset:{1024*t}", vm=("H", k))]
            if t == 1:
                grp.append(Op("s_add_u32 s37, s37, 2048"))
            g.append(grp)
        return g

    ROWS = [(0, 16), (32, 48), (64, 80), (112, 128), (144, 160), (176, 192), (96, 208)]

    def w_read(fi):
        s, rem = divmod(fi, 28)
        sg, i = divmod(rem, 4)
        slot = s % 4
        reg = WA + 4 * (fi % 8)
        return [Op(f"ds_read_b64_tr_b16 {vr(reg+2*h,2)}, v{VL+4*(slot>>1)+i} offset:{(slot&1)*STG + ROWS[sg][h]*128}") for h in range(2)]

    NST = 16

    def stage(s):
        mf = []
        fill = {}
        def put(i, ops):
            fill.setdefault(i, []).extend(ops)
        tail = s >= NST - 4
        for sg in range(7):
            k = 7 * s + sg
            put(len(mf), [Op("", need=[("H", k)], site=("H", s if tail else s % 4, sg))])
            for i in range(4):
                fi = s * 28 + sg * 4 + i
                i0 = len(mf)
                nrem = min(LA, NST * 28 - fi) - 1
                put(i0, [Op(f"s_waitcnt lgkmcnt({2*nrem})")])
                if fi + LA < NST * 28:
                    put(i0 + 1, w_read(fi + LA))
                for t in range(2):
                    acc = ACC + 8 * i + 4 * t
                    mf.append(Op(f"v_mfma_f32_16x16x32_bf16 {vr(acc,4)}, {vr(WA+4*(fi%8),4)}, {vr(HA+8*(k%14)+4*t,4)}, {vr(acc,4)}"))
            if k + 13 < 7 * NST:
                for t, grp in enumerate(h_load(k + 13)):
                    put(sg * 8 + 2 + 2 * t, grp)
        if s + 1 < NST:
            put(2 * 18, [Op("", need=[("W", s + 1)], site=("B", s if tail else s % 4)), Op("s_barrier")])
            if s + 3 < NST:
                for j, grp in enumerate(w_dma(s + 3)):
                    put(2 * (19 + j) + 1, grp)
        return weave(mf, fill)

    def flat(gs):
        return [o for g in gs for o in g]
    pro = []
    for tt in range(2):
        for i in range(4):
            pro.append(Op(f"buffer_load_dwordx2 {vr(RES+8*tt+2*i,2)}, v24, s[24:27], {'s40' if tt else '0'} offen offset:{32*i}", vm="R"))
    pro += flat(w_dma(0))
    for k in range(4):
        pro += flat(h_load(k))
    pro += flat(w_dma(1))
    for k in range(4, 9):
        pro += flat(h_load(k))
    pro += flat(w_dma(2))
    for k in range(9, 13):
        pro += flat(h_load(k))
    pro += [Op(f"v_mov_b32 v{ACC+i}, 0") for i in range(32)]
    pro += [Op("s_mov_b32 s39, 0")]
    pro += [Op("", need=[("W", 0)], site="P"), Op("s_barrier")]
    for fi in range(LA):
        pro += w_read(fi)
    stages = [stage(s) for s in range(NST)]
    vmn = resolve_vm(pro + [o for st in stages for o in st])
    emit(a, pro, vmn)
    a(f"L_{name}_loop:")
    for s in range(4):
        emit(a, stages[s], vmn)
    a("s_add_u32 s39, s39, 1")
    a("s_cmp_lt_u32 s39, 3")
    a(f"s_cbranch_scc1 L_{name}_loop")
    for s in range(12, 16):
        emit(a, stages[s], vmn)
    a("s_mov_b32 s34, 0xffff0000")
    T = HA
    for tt in range(2):
        for i in range(4):
            r = RES + 8 * tt + 2 * i
            t = T + 16 * tt + 4 * i
            a(f"v_lshlrev_b32 v{t}, 16, v{r}")
            a(f"v_and_b32 v{t+1}, s34, v{r}")
            a(f"v_lshlrev_b32 v{t+2}, 16, v{r+1}")
            a(f"v_and_b32 v{t+3}, s34, v{r+1}")
    O = HA + 32
    for tt in range(2):
        for i in range(4):
            t = T + 16 * tt + 4 * i
            acc = ACC + 8 * i + 4 * tt
            a(f"v_pk_add_f32 {vr(t,2)}, {vr(t,2)}, {vr(acc,2)}")
            a(f"v_pk_add_f32 {vr(t+2,2)}, {vr(t+2,2)}, {vr(acc+2,2)}")
            a(f"v_cvt_pk_bf16_f32 v{O+8*tt+2*i}, v{t}, v{t+1}")
            a(f"v_cvt_pk_bf16_f32 v{O+8*tt+2*i+1}, v{t+2}, v{t+3}")
    a("s_nop 1")
    for tt in range(2):
        for pr in range(2):
            o = O + 8 * tt + 4 * pr
            a(f"v_permlane16_swap_b32 v{o}, v{o+2}")
            a(f"v_permlane16_swap_b32 v{o+1}, v{o+3}")
    a("s_nop 1")
    for tt in range(2):
        for pr in range(2):
            o = O + 8 * tt + 4 * pr
            a(f"buffer_store_dwordx4 {vr(o,4)}, v25, s[12:15], {'s40' if tt else '0'} offen offset:{64*pr}")
    a(f"L_{name}_end:")
    a("s_endpgm")
    return a.text(), kernel_desc(name, 224, 56, 224), (256, 256, 4 * STG)


HEADER = """; interleave_layers: H3 ssm-conv + GEGLU FFN, gfx950.  Generated by dev/gen.py (hand-designed kernels).
"""


def build():
    ks = [
        ("prep_kernel", gen_prep("prep_kernel")),
        ("conv_kernel", gen_conv("conv_kernel")),
        ("ln1_kernel", gen_ln("ln1_kernel", True, 0, WS_X1)),
        ("g1_kernel", gen_g1("g1_kernel")),
        ("g2a_kernel", gen_g2("g2a_kernel", WS_X1, False, WS_X2)),
        ("ln2_kernel", gen_ln("ln2_kernel", False, WS_X2, WS_X3)),
        ("g2b_kernel", gen_g2("g2b_kernel", WS_X3, True, 0)),
    ]
    d = dict(ks)
    order = ["prep_kernel", "conv_kernel", "ln1_kernel", "g1_kernel", "g2a_kernel", "ln2_kernel", "g1_kernel", "g2b_kernel"]
    out = HEADER
    for n in order:
        g, b, l = d[n][2]
        out += f"; @launch kernel={n} grid=({g},1,1) block=({b},1,1) lds={l}\n"
    out += '.amdgcn_target "amdgcn-amd-amdhsa--gfx950"\n.text\n'
    for n, (txt, desc, _) in ks:
        out += txt + desc
    return out


if __name__ == "__main__":
    path = sys.argv[1] if len(sys.argv) > 1 else "interleave_layers__ssm_conv_h3__geglu_ffn__prompt.s"
    open(path, "w").write(build())
    print("wrote", path)
```

```python
import sys, math, struct

S, D, F = 2048, 1024, 3584
KA_Q, KA_K, KA_V, KA_SH, KA_SK, KA_SD, KA_BX, KA_WG, KA_WU, KA_WD, KA_OUT, KA_DBG, KA_WS = [8 * i for i in range(13)]
WS_UT = 0x0000000
WS_Y = 0x0400000
WS_X1 = 0x0800000
WS_XN = 0x0C00000
WS_H = 0x1000000
LSTR = 0x2000000
WS_X2 = 0x4000000
WS_FL = 0x4400000
WS_W2 = 0x4800000
WS_DBG = 0x8000000
MB4 = 4 * 1024 * 1024
H_BYTES = S * F * 2
W_BYTES = D * F * 2
F0, F1, F2, F3, F4, F5 = 0x0000, 0x0800, 0x1000, 0x1800, 0x2000, 0x2400
STG = 28672
LDS_LN = 5 * STG
LDS_TOTAL = LDS_LN + 1024
CSTR = 4160
UOFF = 4 * CSTR
WSTR = UOFF + 4608
NAME = "interleave_layers__ssm_conv_h3__geglu_ffn__prompt_kernel"
OPT = {}

C0 = 2.0 * math.sqrt(2.0 / math.pi) * math.log2(math.e)
C1 = C0 * 0.044715
SC = C1 ** (1.0 / 3.0)
KC = C0 / SC
f2u = lambda x: struct.unpack("<I", struct.pack("<f", x))[0]


class Asm:
    def __init__(self):
        self.lines = []

    def __call__(self, s):
        for l in s.split("\n"):
            l = l.strip()
            if l:
                self.lines.append("    " + l if not l.endswith(":") else l)

    def text(self):
        return "\n".join(self.lines) + "\n"


def vr(b, n=1, t="v"):
    return f"{t}{b}" if n == 1 else f"{t}[{b}:{b+n-1}]"


def srd(a, r, base, off, nbytes, soff=None):
    if off or soff is None:
        if off:
            a(f"s_add_u32 s{r}, s{base}, {off:#x}")
            a(f"s_addc_u32 s{r+1}, s{base+1}, 0")
        else:
            a(f"s_mov_b32 s{r}, s{base}")
            a(f"s_mov_b32 s{r+1}, s{base+1}")
        if soff is not None:
            a(f"s_add_u32 s{r}, s{r}, s{soff}")
            a(f"s_addc_u32 s{r+1}, s{r+1}, 0")
    else:
        a(f"s_add_u32 s{r}, s{base}, s{soff}")
        a(f"s_addc_u32 s{r+1}, s{base+1}, 0")
    a(f"s_mov_b32 s{r+2}, {nbytes:#x}")
    a(f"s_mov_b32 s{r+3}, 0x00020000")


def stamp(a, reg):
    if OPT.get("stamp"):
        a("s_memrealtime s[58:59]")
        a("s_waitcnt lgkmcnt(0)")
        a(f"s_mov_b32 s{reg}, s58")
        a("s_memtime s[58:59]")
        a("s_waitcnt lgkmcnt(0)")
        a(f"s_mov_b32 s{reg+1}, s58")


class Op:
    def __init__(self, text, vm=None, need=None, site=None):
        self.text, self.vm, self.need, self.site = text, vm, need, site


def resolve_vm(stream):
    issued = []
    res = {}
    for op in stream:
        if op.need is not None:
            last = -1
            for t in op.need:
                idx = [i for i, x in enumerate(issued) if x == t]
                assert idx, f"tag {t} never issued"
                last = max(last, idx[-1])
            n = len(issued) - 1 - last
            res[op.site] = min(res.get(op.site, 63), n)
        if op.vm is not None:
            issued.append(op.vm)
    return res


def emit(a, ops, vmn):
    for op in ops:
        if op.need is not None:
            a(f"s_waitcnt vmcnt({vmn[op.site]})")
        elif op.text:
            a(op.text)


def weave(mfmas, fill):
    out = []
    for i, m in enumerate(mfmas):
        out += fill.get(i, [])
        out.append(m)
    out += fill.get(len(mfmas), [])
    return out


def flat(gs):
    return [o for g in gs for o in g]


_lbl = [0]


def label(p):
    _lbl[0] += 1
    return f"L_{p}_{_lbl[0]}"


SC1 = "sc1"


def flag_store(a, soff_reg):
    a("s_mov_b64 exec, 1")
    a("v_mov_b32 v3, 0")
    a("v_mov_b32 v4, s30")
    a(f"buffer_store_dword v4, v3, s[24:27], s{soff_reg} offen {SC1}")
    a("s_mov_b64 exec, -1")


def poll(a, soff_reg, wide=False, also_wide=None):
    L = label("poll")
    E = label("polld")
    a("s_mov_b32 s56, 0")
    a(f"{L}:")
    regs = []
    if wide:
        a(f"buffer_load_dwordx4 v[4:7], v3, s[24:27], s{soff_reg} offen {SC1}")
        regs = [4, 5, 6, 7]
    else:
        a(f"buffer_load_dword v4, v3, s[24:27], s{soff_reg} offen {SC1}")
        regs = [4]
    if also_wide is not None:
        a(f"buffer_load_dwordx4 v[28:31], v2, s[24:27], s{also_wide} offen {SC1}")
        regs += [28, 29, 30, 31]
    a("s_waitcnt vmcnt(0)")
    for r in regs:
        a(f"v_xor_b32 v{r}, s30, v{r}")
    for r in regs[1:]:
        a(f"v_or_b32 v4, v4, v{r}")
    a("v_cmp_ne_u32 vcc, 0, v4")
    a("s_add_u32 s56, s56, 1")
    a("s_cmp_eq_u64 vcc, 0")
    a(f"s_cbranch_scc1 {E}")
    a(f"s_cmp_lt_u32 s56, {OPT.get('spin', 400000)}")
    a(f"s_cbranch_scc1 {L}")
    a(f"{E}:")


VW1 = 8
VL1 = [15, 16, 17]
VX = 2


def g1_wdma(s, soff="s40", advance=True):
    slot = 4 if s == 15 else s % 4
    g = []
    for j in range(7):
        grp = []
        if j in (0, 4):
            grp.append(Op(f"s_add_u32 m0, s42, {slot*STG + (4096 if j == 4 else 0)}"))
            grp.append(Op("s_nop 0"))
        grp.append(Op(f"buffer_load_dwordx4 v{VW1+j}, s[4:7], {soff} offen offset:{1024*(j&3)} lds", vm=("W", s)))
        if j == 6 and advance:
            grp.append(Op(f"s_add_u32 s40, s40, {64*7168}"))
        g.append(grp)
    return g


def build():
    _lbl[0] = 0
    a = Asm()
    a.lines.append(f".globl {NAME}")
    a.lines.append(".p2align 8")
    a.lines.append(f".type {NAME},@function")
    a.lines.append(f"{NAME}:")
    a("s_cmp_ge_u32 s2, 256")
    a("s_cbranch_scc1 L_end")
    stamp(a, 92)
    a(f"""
    s_load_dwordx4 s[44:47], s[0:1], {KA_K}
    s_load_dwordx4 s[48:51], s[0:1], {KA_SH}
    s_load_dwordx2 s[28:29], s[0:1], {KA_WS}
    s_load_dwordx2 s[52:53], s[0:1], {KA_DBG}
    s_load_dwordx2 s[54:55], s[0:1], {KA_Q}
    v_lshrrev_b32 v1, 6, v0
    v_and_b32 v0, 63, v0
    s_and_b32 s37, s2, 7                 ; x
    s_lshr_b32 s38, s2, 3                ; j
    v_readfirstlane_b32 s3, v1           ; wave
    v_lshlrev_b32 v2, 4, v0
    s_and_b32 s31, s37, 1
    s_lshl_b32 s31, s31, 2
    s_and_b32 s39, s38, 3
    s_add_u32 s31, s31, s39              ; rb
    s_lshr_b32 s39, s37, 1               ; q
    s_lshr_b32 s41, s38, 2               ; c8
    s_lshl_b32 s32, s39, 3
    s_add_u32 s32, s32, s41              ; cb = m
    s_and_b32 s42, s39, 1
    s_lshl_b32 s33, s31, 1
    s_add_u32 s33, s33, s42              ; tb4
    s_lshr_b32 s34, s39, 1
    s_lshl_b32 s34, s34, 3
    s_add_u32 s34, s34, s41              ; nb
    s_lshl_b32 s36, s33, 4
    s_add_u32 s36, s36, s34              ; tb8
    s_mov_b32 s35, 0                     ; layer
    """)
    a(f"""
    s_lshl_b32 s39, s37, 1
    s_and_b32 s40, s38, 1
    s_add_u32 s39, s39, s40              ; db
    s_lshr_b32 s40, s38, 1               ; tb
    s_lshl_b32 s41, s39, 7
    s_lshl_b32 s43, s40, 2
    s_add_u32 s43, s43, s41
    s_lshl_b32 s41, s39, 6
    s_and_b32 s42, s3, 1
    s_lshl_b32 s42, s42, 5
    s_add_u32 s41, s41, s42
    v_and_b32 v18, 7, v0
    v_lshlrev_b32 v18, 2, v18
    v_add_u32 v18, s41, v18              ; d0
    s_lshl_b32 s41, s40, 7
    s_lshr_b32 s42, s3, 1
    s_lshl_b32 s42, s42, 6
    s_add_u32 s41, s41, s42
    v_and_b32 v19, 0x38, v0
    v_add_u32 v19, s41, v19              ; t0
    v_lshlrev_b32 v20, 11, v19
    v_lshl_add_u32 v20, v18, 1, v20      ; voffA
    v_add_u32 v21, 0xffffe800, v20
    v_mov_b32 v22, 0x40000000
    v_cmp_eq_u32 vcc, 0, v19
    v_lshlrev_b32 v23, 12, v18
    v_lshlrev_b32 v19, 1, v19
    v_cndmask_b32 v21, v21, v22, vcc     ; voffB
    v_lshlrev_b32 v22, 3, v18
    v_sub_u32 v23, v23, v19
    v_add_u32 v23, 4080, v23
    s_lshl_b32 s39, s37, 5
    s_add_u32 s39, s39, s38              ; wg'
    s_lshl_b32 s40, s39, 2
    s_add_u32 s40, s40, s3
    s_lshl_b32 s41, s40, 12              ; d*4096
    s_waitcnt lgkmcnt(0)
    """)
    srd(a, 24, 52, 0, 256)
    a("s_or_b32 s56, s2, s3")
    a("s_cmp_lg_u32 s56, 0")
    a("s_cbranch_scc1 L_nopub")
    a("s_memrealtime s[56:57]")
    a("s_waitcnt lgkmcnt(0)")
    a("s_or_b32 s30, s56, 1")
    a("s_mov_b32 s56, 0")
    flag_store(a, 56)
    a("L_nopub:")
    srd(a, 20, 54, 0, MB4)
    srd(a, 4, 44, 0, MB4)
    srd(a, 8, 46, 0, MB4)
    srd(a, 12, 48, 0, 8192)
    srd(a, 16, 50, 0, 4096, soff=41)
    a("s_movk_i32 s44, 0x1000")
    a("s_movk_i32 s45, 0x2000")
    a("s_movk_i32 s46, 0x3000")
    KR, VR, SR, T, K, O, V = 100, 122, 138, 146, 162, 206, 24
    HR, SP, BT = 32, 80, 92
    XR = 240
    a(f"buffer_load_dwordx4 {vr(SR,4)}, v22, s[12:15], 0 offen")
    a(f"buffer_load_dwordx4 {vr(SR+4,4)}, v22, s[12:15], 0 offen offset:16")
    so = ["0", "s44", "s45", "s46"]
    rows = [("v21", so[r >> 1], 2048 * (r & 1)) for r in range(3)] + [("v20", so[r >> 1], 2048 * (r & 1)) for r in range(8)]
    for i, (vo, s_, im) in enumerate(rows):
        a(f"buffer_load_dwordx2 {vr(KR+2*i,2)}, {vo}, s[4:7], {s_} offen offset:{im}")
    for i, (vo, s_, im) in enumerate(rows[3:]):
        a(f"buffer_load_dwordx2 {vr(VR+2*i,2)}, {vo}, s[8:11], {s_} offen offset:{im}")
    a("v_mov_b32 v3, 0")
    a(f"buffer_load_dword v30, v3, s[24:27], 0 offen {SC1}")
    NT = 0
    if not OPT.get("notouch"):
        a("s_cmp_lg_u32 s3, 3")
        a("s_cbranch_scc1 L_notouch")
        a("s_getpc_b64 s[56:57]")
        a("L_pc:")
        a("s_lshl_b32 s47, s38, 11")
        a("v_and_b32 v6, 15, v0")
        a("v_lshlrev_b32 v6, 7, v6")
        a("v_add_u32 v6, s47, v6")
        a("v_min_u32 v4, L_end - L_pc, v6")
        a("v_mov_b32 v5, s57")
        a("v_add_co_u32 v4, vcc, s56, v4")
        a("s_nop 1")
        a("v_addc_co_u32 v5, vcc, 0, v5, vcc")
        a("global_load_dword v31, v[4:5], off")
        a("L_notouch:")
    if OPT.get("tlb"):
        a("s_cmp_lg_u32 s3, 2")
        a("s_cbranch_scc1 L_notlb")
        srd(a, 56 - 0 if False else 12, 28, 0, 0x5000000)
        a(f"v_lshlrev_b32 v6, {OPT['tlb']}, v0")
        a("s_lshl_b32 s47, s38, 7")
        for h in range((0x5000000 >> OPT['tlb']) // 64 + 1):
            a("buffer_load_dword v31, v6, s[12:15], s47 offen")
            a(f"s_add_u32 s47, s47, {64 << OPT['tlb']}")
        a("L_notlb:")
    a(f"s_load_dwordx2 s[56:57], s[0:1], {KA_SD}")
    a("s_and_b32 s47, s3, 1")
    a("s_mul_i32 s47, s47, 448")
    a("s_mul_i32 s48, s32, 224")
    a("s_movk_i32 s49, 4682")
    for j in range(7):
        a(f"v_add_u32 v24, {64*j}, v0")
        a("v_add_u32 v24, s47, v24")
        a("v_mul_lo_u32 v25, v24, s49")
        a("v_lshrrev_b32 v25, 16, v25")
        a("v_mul_u32_u24 v26, 14, v25")
        a("v_sub_u32 v26, v24, v26")
        a("v_and_b32 v27, 0x33, v25")
        a("v_and_b32 v28, 4, v25")
        a("v_lshl_or_b32 v27, v28, 1, v27")
        a("v_and_b32 v28, 8, v25")
        a("v_lshrrev_b32 v28, 1, v28")
        a("v_or_b32 v27, v27, v28")
        a("v_mul_u32_u24 v27, 7168, v27")
        a("v_lshl_add_u32 v27, v26, 4, v27")
        a(f"v_add_u32 v{VW1+j}, s48, v27")
        if j & 3:
            a(f"v_subrev_u32 v{VW1+j}, {1024*(j&3)}, v{VW1+j}")
    a("v_bfe_u32 v24, v0, 2, 3")
    a("v_lshrrev_b32 v25, 5, v0")
    a("v_lshl_add_u32 v24, v25, 4, v24")
    a("v_mul_u32_u24 v24, 224, v24")
    a("v_and_b32 v25, 3, v0")
    a(f"v_lshl_add_u32 v{VL1[0]}, v25, 3, v24")
    a(f"v_add_u32 v{VL1[1]}, {2*STG}, v{VL1[0]}")
    a(f"v_add_u32 v{VL1[2]}, {4*STG}, v{VL1[0]}")
    a("s_waitcnt lgkmcnt(0)")
    a("s_lshr_b32 s47, s40, 1")
    a("s_lshl_b32 s47, s47, 2")
    a("s_load_dword s48, s[56:57], s47")
    srd(a, 12, 28, WS_UT, MB4)
    after = 1
    a("s_mov_b32 s49, 0xffff0000")
    a(f"s_waitcnt vmcnt({11 + 8 + after})")
    stamp(a, 94)
    for e in range(4):
        a(f"v_lshlrev_b32 v{T+0+e}, 16, v{SR+2*e}")
        a(f"v_and_b32 v{T+4+e}, s49, v{SR+2*e}")
        a(f"v_lshlrev_b32 v{T+8+e}, 16, v{SR+2*e+1}")
        a(f"v_and_b32 v{T+12+e}, s49, v{SR+2*e+1}")
    for i in range(11):
        if i % 2 == 0:
            a(f"s_waitcnt vmcnt({max(11 - i - 2, 0) + 8 + after})")
        for p in range(2):
            a(f"v_lshlrev_b32 v{K+4*i+2*p}, 16, v{KR+2*i+p}")
            a(f"v_and_b32 v{K+4*i+2*p+1}, s49, v{KR+2*i+p}")
    for j in range(4):
        a(f"buffer_load_dwordx4 {vr(HR+12*j,4)}, v2, s[16:19], 0 offen offset:{1024*j}")
        a(f"buffer_load_dwordx2 {vr(HR+12*j+4,2)}, v2, s[16:19], 0 offen offset:{1024*j+16}")
    a("v_mov_b32 v3, 0x10000")
    a("v_cmp_eq_u32 vcc, 1, v0")
    a("s_nop 1")
    a("v_cndmask_b32 v3, v3, 0, vcc")
    a(f"buffer_load_dwordx2 {vr(SP+4,2)}, v3, s[16:19], 0 offen")
    after += 9
    for j in range(4):
        for t in range(8):
            for p in range(2):
                kk = K + 4 * (3 + t - j) + 2 * p
                if j == 0:
                    a(f"v_pk_mul_f32 {vr(O+4*t+2*p,2)}, {vr(kk,2)}, {vr(T+2*p,2)}")
                else:
                    a(f"v_pk_fma_f32 {vr(O+4*t+2*p,2)}, {vr(kk,2)}, {vr(T+4*j+2*p,2)}, {vr(O+4*t+2*p,2)}")
    a(f"s_waitcnt vmcnt({after})")
    for t in range(8):
        for p in range(2):
            a(f"v_lshlrev_b32 v{K+4*t+2*p}, 16, v{VR+2*t+p}")
            a(f"v_and_b32 v{K+4*t+2*p+1}, s49, v{VR+2*t+p}")
    for t in range(8):
        for p in range(2):
            a(f"v_pk_mul_f32 {vr(O+4*t+2*p,2)}, {vr(O+4*t+2*p,2)}, {vr(K+4*t+2*p,2)}")
    for e in range(4):
        for i in range(4):
            a(f"v_cvt_pk_bf16_f32 v{KR+4*e+i}, v{O+4*(7-2*i)+e}, v{O+4*(6-2*i)+e}")
        a(f"buffer_store_dwordx4 {vr(KR+4*e,4)}, v23, s[12:15], {so[e]} offen {SC1}")
    a(f"s_mul_i32 s50, s3, {WSTR}")
    a(f"s_add_u32 s51, s50, {UOFF}")
    for i in range(4):
        a(f"v_mov_b32 v{SP+i}, 0")
    a("v_lshl_add_u32 v4, v0, 3, s51")
    a(f"ds_write_b64 v4, {vr(SP,2)} offset:4096")
    a("v_add_u32 v5, s50, v2")
    a("v_and_b32 v6, 15, v0")
    a("v_lshrrev_b32 v7, 4, v0")
    a("v_add_u32 v18, 1, v6")
    a("v_and_b32 v19, 3, v18")
    a(f"v_mul_u32_u24 v19, {CSTR}, v19")
    a("v_lshrrev_b32 v18, 2, v18")
    a("v_lshlrev_b32 v18, 3, v18")
    a("v_add_u32 v18, v18, v19")
    a("v_lshl_add_u32 v18, v7, 4, v18")
    a("v_add_u32 v18, s50, v18")
    a("v_lshlrev_b32 v19, 5, v6")
    a("v_sub_u32 v19, 480, v19")
    a("v_lshl_add_u32 v19, v7, 4, v19")
    a("v_add_u32 v19, s51, v19")
    a("v_lshlrev_b32 v20, 5, v6")
    a("v_lshl_add_u32 v20, v7, 3, v20")
    a(f"v_sub_u32 v21, {4088 - 3584}, v20")
    a("v_add_u32 v21, s51, v21")
    a(f"s_mul_i32 s52, s3, {CSTR}")
    a("s_add_u32 s52, s52, s50")
    a("v_lshrrev_b32 v20, 1, v20")
    a("v_add_u32 v20, s52, v20")

    def hbuild(b, off0):
        e = b + 6
        for i in range(5):
            a(f"v_alignbit_b32 v{e+i}, v{b+i+1}, v{b+i}, 16")
        a(f"ds_write_b128 v5, {vr(b,4)} offset:{off0}")
        a(f"ds_write_b128 v5, {vr(e,4)} offset:{off0+CSTR}")
        for i in range(4):
            a(f"v_mov_b32 v{BT+i}, v{b+1+i}")
        for i in range(4):
            a(f"v_mov_b32 v{BT+4+i}, v{e+1+i}")
        a(f"ds_write_b128 v5, {vr(BT,4)} offset:{off0+2*CSTR}")
        a(f"ds_write_b128 v5, {vr(BT+4,4)} offset:{off0+3*CSTR}")

    a("s_waitcnt vmcnt(4)")
    for j in range(4):
        hbuild(HR + 12 * j, 32 + 1024 * j)
    a("s_mov_b64 exec, 3")
    hbuild(SP, 0)
    a("s_mov_b64 exec, -1")
    ACC = 100
    for i in range(32):
        a(f"v_mov_b32 v{ACC+i}, 0")
    a("s_waitcnt lgkmcnt(0)")
    a("s_and_b32 s47, s40, 1")
    a("s_lshl_b32 s53, s48, 16")
    a("s_and_b32 s48, s48, 0xffff0000")
    a("s_cmp_eq_u32 s47, 0")
    a("s_cselect_b32 s48, s53, s48")
    a(f"s_load_dwordx4 s[44:47], s[0:1], {KA_WG}")
    a("v_readfirstlane_b32 s30, v30")
    a("v_mov_b32 v3, 0")
    a("s_mov_b32 s56, 0")
    a("L_nonce:")
    a("s_cmp_lg_u32 s30, 0")
    a("s_cbranch_scc1 L_nonced")
    a(f"buffer_load_dword v4, v3, s[24:27], 0 offen {SC1}")
    a("s_waitcnt vmcnt(0)")
    a("v_readfirstlane_b32 s30, v4")
    a("s_add_u32 s56, s56, 1")
    a(f"s_cmp_lt_u32 s56, {OPT.get('spin', 400000)}")
    a("s_cbranch_scc1 L_nonce")
    a("L_nonced:")
    srd(a, 24, 28, WS_FL, 0x4000)
    a("s_waitcnt vmcnt(0)")
    a("s_barrier")
    stamp(a, 96)
    a("s_cmp_lg_u32 s3, 0")
    a("s_cbranch_scc1 L_p0w")
    flag_store(a, 43)
    a("v_and_b32 v3, 15, v0")
    a("v_lshlrev_b32 v3, 2, v3")
    a("s_lshr_b32 s43, s39, 4")
    a("s_lshl_b32 s43, s43, 7")
    poll(a, 43)
    a("L_p0w:")
    a("s_mov_b32 m0, s51")
    a("s_barrier")
    for j in range(4):
        a(f"buffer_load_dwordx4 v2, s[12:15], s41 offen offset:{1024*j} {SC1} lds")
    a("s_waitcnt lgkmcnt(0)")
    a("s_cmp_ge_u32 s3, 2")
    a("s_cselect_b32 s4, s46, s44")
    a("s_cselect_b32 s5, s47, s45")
    a(f"s_mov_b32 s6, {W_BYTES}")
    a("s_mov_b32 s7, 0x00020000")
    srd(a, 8, 28, WS_Y, MB4)
    a("v_and_b32 v3, 7, v0")
    a("v_lshlrev_b32 v3, 11, v3")
    a("v_lshrrev_b32 v4, 3, v0")
    a("v_lshl_add_u32 v3, v4, 4, v3")
    a("s_lshl_b32 s47, s36, 14")
    a("s_lshl_b32 s56, s3, 7")
    a("s_add_u32 s47, s47, s56")
    a("s_lshl_b32 s53, s2, 1")
    a("s_and_b32 s54, s3, 1")
    a("s_add_u32 s53, s53, s54")
    a("s_lshl_b32 s53, s53, 13")
    a("v_lshlrev_b32 v22, 7, v0")
    a("s_waitcnt vmcnt(0)")
    stamp(a, 98)
    for i in range(4):
        a(f"buffer_load_dwordx4 {vr(XR+4*i,4)}, v3, s[20:23], s47 offen offset:{512*i}")
    a("buffer_load_dword v31, v22, s[4:7], s53 offen")
    if OPT.get("wdtouch"):
        a(f"s_load_dwordx2 s[44:45], s[0:1], {KA_WD}")
        a("s_lshl_b32 s53, s2, 2")
        a("s_add_u32 s53, s53, s3")
        a("s_lshl_b32 s53, s53, 13")
        a("s_waitcnt lgkmcnt(0)")
        srd(a, 16, 44, 0, W_BYTES)
        a("buffer_load_dword v31, v22, s[16:19], s53 offen")

    def creads(r):
        st = 64 * (r & 1)
        out = []

        def rdA(mu):
            m = 8 * mu + r
            out.append(f"ds_read_b64 {vr(st+4*mu,2,'a')}, v18 offset:{64*m}")
            out.append(f"ds_read_b64 {vr(st+4*mu+2,2,'a')}, v18 offset:{64*m+8}")

        def rdB(nu):
            q = 8 * nu - r
            out.append(f"ds_read_b128 {vr(st+32+4*nu,4,'a')}, v19 offset:{3584-64*q}")
        rdA(0)
        for nu in range(8):
            rdB(nu)
        for mu in range(1, 8):
            rdA(mu)
        return out

    UP, TMP, TRR = 132, 148, 180
    for l in creads(0):
        a(l)
    for r in range(8):
        st = 64 * (r & 1)
        nxt = creads(r + 1) if r < 7 else [f"ds_read_b64 {vr(UP+2*n,2)}, v21 offset:{512*(7-n)}" for n in range(8)]
        i = 0
        if r > 0:
            a("s_waitcnt lgkmcnt(0)")
        for mu in range(8):
            if r == 0:
                a(f"s_waitcnt lgkmcnt({min(15, 14 - 2*mu + min(i, len(nxt)))})")
            for n in range(mu, 8):
                a(f"v_mfma_f32_16x16x32_bf16 {vr(ACC+4*n,4)}, {vr(st+4*mu,4,'a')}, {vr(st+32+4*(n-mu),4,'a')}, {vr(ACC+4*n,4)}")
                if i < len(nxt):
                    a(nxt[i])
                i += 1
    a("s_waitcnt lgkmcnt(0)")
    for n in range(8):
        u = UP + 2 * n
        a(f"v_and_b32 v{TMP+4*n+0}, s49, v{u+1}")
        a(f"v_lshlrev_b32 v{TMP+4*n+1}, 16, v{u+1}")
        a(f"v_and_b32 v{TMP+4*n+2}, s49, v{u}")
        a(f"v_lshlrev_b32 v{TMP+4*n+3}, 16, v{u}")
    for n in range(8):
        for p in (0, 2):
            a(f"v_pk_fma_f32 {vr(ACC+4*n+p,2)}, {vr(TMP+4*n+p,2)}, s[48:49], {vr(ACC+4*n+p,2)} op_sel_hi:[1,0,1]")
        a(f"v_cvt_pk_bf16_f32 v{TMP+4*n}, v{ACC+4*n}, v{ACC+4*n+2}")
        a(f"v_cvt_pk_bf16_f32 v{TMP+4*n+1}, v{ACC+4*n+1}, v{ACC+4*n+3}")
        a(f"ds_write2st64_b32 v20, v{TMP+4*n}, v{TMP+4*n+1} offset0:{n} offset1:{8+n}")
    a("v_bfe_u32 v24, v0, 2, 2")
    a(f"v_mul_u32_u24 v24, {WSTR+CSTR}, v24")
    a("v_lshl_add_u32 v24, v7, 5, v24")
    a("v_and_b32 v25, 3, v0")
    a("v_lshl_add_u32 v24, v25, 3, v24")
    a("s_lshl_b32 s53, s3, 9")
    a("v_add_u32 v24, s53, v24")
    a("v_lshrrev_b32 v25, 3, v0")
    a("v_lshlrev_b32 v25, 15, v25")
    a("v_and_b32 v26, 7, v0")
    a("v_lshl_add_u32 v25, v26, 4, v25")
    a("s_lshl_b32 s53, s3, 20")
    a("s_lshl_b32 s54, s39, 7")
    a("s_add_u32 s53, s53, s54")
    a("s_waitcnt lgkmcnt(0)")
    a("s_barrier")
    for e in range(4):
        a(f"ds_read_b64_tr_b16 {vr(TRR+4*e,2)}, v24 offset:{128*e}")
        a(f"ds_read_b64_tr_b16 {vr(TRR+4*e+2,2)}, v24 offset:{128*e+2048}")
    for e in range(4):
        a(f"s_waitcnt lgkmcnt({6-2*e})")
        a(f"buffer_store_dwordx4 {vr(TRR+4*e,4)}, v25, s[8:11], s53 offen {SC1}")
        if e < 3:
            a("s_add_u32 s53, s53, 0x40000")
    a("s_lshl_b32 s43, s39, 2")
    a(f"s_add_u32 s43, s43, {F1}")
    a(f"s_movk_i32 s44, {F1}")
    a("s_waitcnt vmcnt(0)")
    a("s_barrier")
    stamp(a, 100)
    a("s_cmp_lg_u32 s3, 0")
    a("s_cbranch_scc1 L_p1w")
    flag_store(a, 43)
    a("v_mov_b32 v3, v2")
    poll(a, 44, wide=True)
    a("L_p1w:")

    YR, X, Y = 32, 48, 80
    a("L_layer:")
    a(f"s_mul_i32 s57, s35, {LSTR}")
    a("v_and_b32 v18, 7, v0")
    a("v_lshrrev_b32 v19, 3, v0")
    a("v_lshlrev_b32 v20, 11, v18")
    a("v_lshl_add_u32 v20, v19, 4, v20")
    a("s_lshl_b32 s47, s36, 14")
    a("s_lshl_b32 s56, s3, 7")
    a("s_add_u32 s47, s47, s56")
    a("v_lshlrev_b32 v21, 8, v19")
    a("v_lshl_add_u32 v21, v18, 3, v21")
    a("s_lshr_b32 s44, s36, 1")
    a("s_lshl_b32 s44, s44, 15")
    a("s_and_b32 s45, s36, 1")
    a("s_lshl_b32 s46, s45, 6")
    a("s_add_u32 s44, s44, s46")
    a("s_lshl_b32 s46, s3, 11")
    a("s_add_u32 s44, s44, s46")
    a("v_lshrrev_b32 v22, 2, v19")
    a("v_lshlrev_b32 v22, 12, v22")
    a("v_and_b32 v23, 3, v19")
    a("v_lshl_add_u32 v22, v23, 8, v22")
    a("v_lshl_add_u32 v22, v18, 4, v22")
    a("s_lshr_b32 s50, s36, 3")
    a("s_lshl_b32 s50, s50, 17")
    a("s_bfe_u32 s46, s36, 0x20001")
    a("s_lshl_b32 s46, s46, 10")
    a("s_add_u32 s50, s50, s46")
    a("s_lshl_b32 s46, s45, 7")
    a("s_add_u32 s50, s50, s46")
    a("s_lshl_b32 s46, s3, 13")
    a("s_add_u32 s50, s50, s46")
    a("v_lshlrev_b32 v24, 5, v18")
    a(f"v_add_u32 v24, {LDS_LN}, v24")
    a("s_lshl_b32 s46, s3, 3")
    a("v_add_u32 v23, s46, v24")
    srd(a, 8, 28, WS_XN, MB4, soff=57)
    srd(a, 12, 28, WS_X1, MB4, soff=57)
    srd(a, 16, 28, WS_X2, MB4)
    srd(a, 20, 28, WS_Y, MB4)
    a("s_mul_i32 s42, s3, 7168")
    a("s_mov_b32 s40, 0")
    a(f"s_mov_b32 s41, {15*64*7168}")

    def yloads():
        for i in range(4):
            for p in range(2):
                a(f"buffer_load_dwordx2 {vr(YR+4*i+2*p,2)}, v21, s[20:23], s44 offen offset:{128*p} {SC1}")
            if i < 3:
                a("s_add_u32 s44, s44, 0x2000")

    def g1_first_dmas():
        for o in flat(g1_wdma(0)) + flat(g1_wdma(1)) + flat(g1_wdma(2)) + flat(g1_wdma(15, "s41", False)):
            a(o.text)

    a("s_cmp_eq_u32 s35, 0")
    a("s_cbranch_scc1 L_ln_a")
    yloads()
    a("L_ln_a:")
    a("s_cmp_eq_u32 s3, 0")
    a("s_cbranch_scc1 L_ln_b")
    g1_first_dmas()
    a("L_ln_b:")
    a("s_barrier")
    a("s_cmp_lg_u32 s35, 0")
    a("s_cbranch_scc1 L_ln_l1")
    yloads()
    a("s_branch L_ln_go")
    a("L_ln_l1:")
    for i in range(4):
        a(f"buffer_load_dwordx4 {vr(XR+4*i,4)}, v20, s[16:19], s47 offen offset:{512*i} {SC1}")
    a("L_ln_go:")
    stamp(a, 60)
    a("s_mov_b32 s49, 0xffff0000")
    a("s_mov_b32 s51, 0x3a800000")
    a("s_mov_b32 s52, 0x3727c5ac")
    a("s_waitcnt vmcnt(0)")
    stamp(a, 62)
    for p in range(16):
        a(f"v_lshlrev_b32 v{X+2*p}, 16, v{XR+p}")
        a(f"v_and_b32 v{X+2*p+1}, s49, v{XR+p}")

    def stats(lds_off, scale, mid=None):
        a(f"v_pk_add_f32 v[112:113], {vr(X,2)}, {vr(X+2,2)}")
        a(f"v_pk_add_f32 v[116:117], {vr(X+4,2)}, {vr(X+6,2)}")
        a(f"v_pk_mul_f32 v[114:115], {vr(X,2)}, {vr(X,2)}")
        a(f"v_pk_mul_f32 v[118:119], {vr(X+2,2)}, {vr(X+2,2)}")
        a(f"v_pk_fma_f32 v[114:115], {vr(X+4,2)}, {vr(X+4,2)}, v[114:115]")
        a(f"v_pk_fma_f32 v[118:119], {vr(X+6,2)}, {vr(X+6,2)}, v[118:119]")
        for p in range(4, 16):
            b = 112 + 4 * (p & 1)
            a(f"v_pk_add_f32 {vr(b,2)}, {vr(b,2)}, {vr(X+2*p,2)}")
            a(f"v_pk_fma_f32 {vr(b+2,2)}, {vr(X+2*p,2)}, {vr(X+2*p,2)}, {vr(b+2,2)}")
        a("v_pk_add_f32 v[112:113], v[112:113], v[116:117]")
        a("v_pk_add_f32 v[114:115], v[114:115], v[118:119]")
        a("v_add_f32 v112, v112, v113")
        a("v_add_f32 v113, v114, v115")
        a("s_nop 1")
        a("v_add_f32_dpp v112, v112, v112 row_ror:8 row_mask:0xf bank_mask:0xf")
        a("v_add_f32_dpp v113, v113, v113 row_ror:8 row_mask:0xf bank_mask:0xf")
        for sw in ("v_permlane16_swap_b32", "v_permlane32_swap_b32"):
            a("v_mov_b32 v114, v112")
            a("v_mov_b32 v115, v113")
            a("s_nop 1")
            a(f"{sw} v112, v114")
            a(f"{sw} v113, v115")
            a("s_nop 1")
            a("v_pk_add_f32 v[112:113], v[112:113], v[114:115]")
        a(f"ds_write_b64 v23, v[112:113] offset:{lds_off}")
        if mid:
            mid()
        a("s_waitcnt lgkmcnt(0)")
        a("s_barrier")
        a(f"ds_read_b128 v[112:115], v24 offset:{lds_off}")
        a(f"ds_read_b128 v[116:119], v24 offset:{lds_off+16}")
        a("s_waitcnt lgkmcnt(0)")
        a("v_pk_add_f32 v[112:113], v[112:113], v[114:115]")
        a("v_pk_add_f32 v[116:117], v[116:117], v[118:119]")
        a("v_pk_add_f32 v[112:113], v[112:113], v[116:117]")
        a("v_mul_f32 v114, s51, v112")
        a("v_mul_f32 v113, s51, v113")
        a("v_fma_f32 v113, -v114, v114, v113")
        a("v_max_f32 v113, 0, v113")
        a("v_add_f32 v113, s52, v113")
        a("v_rsq_f32 v112, v113")
        a("s_nop 0")
        if scale:
            a(f"v_mul_f32 v112, {f2u(SC):#x}, v112")
        a("v_mul_f32 v114, v114, v112")

    def unpack_y():
        for p in range(16):
            a(f"v_lshlrev_b32 v{Y+2*p}, 16, v{YR+p}")
            a(f"v_and_b32 v{Y+2*p+1}, s49, v{YR+p}")

    stats(0, False, unpack_y)
    for p in range(16):
        t = 116 + 2 * (p & 3)
        a(f"v_pk_fma_f32 {vr(t,2)}, {vr(X+2*p,2)}, v[112:113], v[114:115] op_sel_hi:[1,0,0] neg_lo:[0,0,1] neg_hi:[0,0,1]")
        if p >= 2:
            q = p - 2
            a(f"v_pk_fma_f32 {vr(X+2*q,2)}, {vr(116+2*(q&3),2)}, {vr(Y+2*q,2)}, {vr(X+2*q,2)}")
    for q in (14, 15):
        a(f"v_pk_fma_f32 {vr(X+2*q,2)}, {vr(116+2*(q&3),2)}, {vr(Y+2*q,2)}, {vr(X+2*q,2)}")

    def store_x():
        for p in range(16):
            a(f"v_cvt_pk_bf16_f32 v{XR+p}, v{X+2*p}, v{X+2*p+1}")
        for i in range(4):
            a(f"buffer_store_dwordx4 {vr(XR+4*i,4)}, v20, s[12:15], s47 offen offset:{512*i} {SC1}")

    stats(256, True, store_x)
    for i in range(4):
        for p in range(4 * i, 4 * i + 4):
            a(f"v_pk_fma_f32 {vr(X+2*p,2)}, {vr(X+2*p,2)}, v[112:113], v[114:115] op_sel_hi:[1,0,0] neg_lo:[0,0,1] neg_hi:[0,0,1]")
        for p in range(4 * i, 4 * i + 4):
            a(f"v_cvt_pk_bf16_f32 v{Y+p}, v{X+2*p}, v{X+2*p+1}")
        a(f"buffer_store_dwordx4 {vr(Y+4*i,4)}, v22, s[8:11], s50 offen {SC1}")
        if i < 3:
            a("s_add_u32 s50, s50, 0x8000")
    stamp(a, 64)
    ACC1 = 32
    a(f"s_load_dwordx2 s[44:45], s[0:1], {KA_WD}")
    srd(a, 12, 28, WS_H, H_BYTES, soff=57)
    a("s_lshl_b32 s53, s35, 10")
    a("s_lshl_b32 s54, s31, 7")
    a("s_add_u32 s53, s53, s54")
    a(f"s_add_u32 s52, s53, {F2}")
    a("s_lshl_b32 s54, s32, 2")
    a("s_add_u32 s43, s52, s54")
    for i in range(96, 224):
        a(f"v_mov_b32 v{ACC1+i}, 0")
    a("s_waitcnt vmcnt(0)")
    a("s_barrier")
    a("s_cmp_lg_u32 s3, 1")
    a("s_cbranch_scc1 L_p2w")
    flag_store(a, 43)
    a("L_p2w:")
    a("s_cmp_lg_u32 s3, 0")
    a("s_cbranch_scc1 L_p2v")
    g1_first_dmas()
    a("L_p2v:")
    for i in range(0, 96):
        a(f"v_mov_b32 v{ACC1+i}, 0")
    a("s_waitcnt lgkmcnt(0)")
    srd(a, 16, 44, 0, W_BYTES)
    srd(a, 20, 28, WS_W2, W_BYTES)
    a("s_lshl_b32 s41, s31, 2")
    a("s_add_u32 s41, s41, s3")
    a("s_lshl_b32 s41, s41, 17")
    a(f"s_add_u32 s50, s41, {30*4096}")
    a("s_lshl_b32 s54, s2, 1")
    a("s_and_b32 s55, s3, 1")
    a("s_add_u32 s54, s54, s55")
    a("s_lshl_b32 s54, s54, 13")
    a(f"s_add_u32 s54, s54, {MB4}")
    a("s_lshl_b32 s51, s35, 30")
    a("s_add_u32 s48, s51, s54")
    a("s_lshl_b32 s55, s2, 2")
    a("s_add_u32 s55, s55, s3")
    a("s_mul_i32 s49, s55, 7")
    a("s_lshl_b32 s47, s49, 10")
    a("s_add_u32 s47, s47, s51")
    a("v_lshlrev_b32 v22, 7, v0")
    a("v_lshrrev_b32 v23, 3, v0")
    a("v_mul_u32_u24 v23, 7, v23")
    a("v_lshlrev_b32 v23, 16, v23")
    a("v_and_b32 v24, 7, v0")
    a("v_lshl_add_u32 v23, v24, 4, v23")
    a("s_cmp_lg_u32 s3, 1")
    a("s_cbranch_scc1 L_p2x")
    a("v_and_b32 v3, 31, v0")
    a("v_lshlrev_b32 v3, 2, v3")
    poll(a, 52)
    a("L_p2x:")
    a("s_waitcnt vmcnt(0)")
    a("s_barrier")
    stamp(a, 66)

    XA, WA, X31, LA = 0, 128, 160, 4
    NST = 16

    X30 = 204

    def xreg(k):
        return {31: X31, 30: X30}.get(k, XA + 16 * (k % 8))

    def x_load(k, soff="s41", own=False):
        g = []
        reg = xreg(k) if own else XA + 16 * (k % 8)
        tag = ("X", k) if (own or k < 30) else "unused"
        for t in range(4):
            grp = [Op(f"buffer_load_dwordx4 {vr(reg+4*t,4,'a')}, v{VX}, s[8:11], {soff} offen offset:{1024*t} {OPT.get('xsc', SC1)}", vm=tag)]
            if t == 3:
                grp.append(Op(f"s_add_u32 {soff}, {soff}, 4096"))
            g.append(grp)
        return g

    seq = [(k, j) for k in range(24) for j in range(14)]
    WIN = [[(24, 0), (24, 1), (24, 2), (24, 3)] + [(k, j) for k in (25, 30, 31, 26, 27, 28, 29) for j in (0, 1)],
           [(k, j) for k in range(25, 32) for j in (2, 3)]]
    WIN += [[(k, j) for k in range(24, 32) for j in (2 * i, 2 * i + 1)] for i in range(2, 7)]
    for wn in WIN:
        seq += wn
    NF = len(seq)

    def w_read(fi):
        k, j = seq[fi]
        s, kk = divmod(k, 2)
        if s == 15:
            al, base = VL1[2], 0
        else:
            al, base = VL1[(s % 4) >> 1], (s & 1) * STG
        base += (j & 1) * 14336 + 32 * kk * 224 + 32 * (j >> 1)
        reg = WA + 4 * (fi % 8)
        return [Op(f"ds_read_b64_tr_b16 {vr(reg+2*h,2,'a')}, v{al} offset:{base + 8*h*224}") for h in range(2)]

    def frag_group(fi, mf, put):
        k, j = seq[fi]
        i0 = len(mf)
        nrem = min(LA, NF - fi) - 1
        put(i0, [Op(f"s_waitcnt lgkmcnt({2*nrem})")])
        if fi + LA < NF:
            rd = w_read(fi + LA)
            put(i0 + 1, [rd[0]])
            put(i0 + 2, [rd[1]])
        for t in range(4):
            acc = ACC1 + 16 * j + 4 * t
            mf.append(Op(f"v_mfma_f32_16x16x32_bf16 {vr(acc,4)}, {vr(WA+4*(fi%8),4,'a')}, {vr(xreg(k)+4*t,4,'a')}, {vr(acc,4)}"))

    BPOS = OPT.get('bpos', 8)

    CPA = 176

    def copy_load(i):
        g = [Op(f"buffer_load_dwordx4 {vr(CPA+4*i,4,'a')}, v{VX}, s[16:19], s47 offen offset:{1024*(i&3)}", vm="CL")]
        if i == 3:
            g.append(Op("s_add_u32 s47, s47, 4096"))
        return g

    def copy_store(i):
        return [[Op("s_lshr_b32 s44, s49, 1"), Op("s_and_b32 s45, s49, 1")],
                [Op(f"s_mul_i32 s45, s45, {8*458752}"), Op("s_lshl_b32 s46, s44, 7")],
                [Op("s_add_u32 s45, s45, s46"), Op("s_and_b32 s44, s44, 6")],
                [Op("s_lshl_b32 s44, s44, 4"), Op("s_add_u32 s45, s45, s51")],
                [Op("v_xor_b32 v24, s44, v23"), Op("s_add_u32 s49, s49, 1")],
                [Op(f"buffer_store_dwordx4 {vr(CPA+4*i,4,'a')}, v24, s[20:23], s45 offen {SC1}", vm="CS")]]

    XSCHED = {0: [2, 3, 4], 1: [5, 6, 7], 2: [8, 9]}

    def g1_stage(s):
        mf, fill = [], {}
        head = s < 4

        def put(i, ops):
            fill.setdefault(i, []).extend(ops)
        for kk in range(2):
            k = 2 * s + kk
            put(len(mf), [Op("", need=[("X", k)], site=("X", head, s % 4, kk))])
            for j in range(14):
                frag_group(s * 28 + kk * 14 + j, mf, put)
            grps = []
            for kx in XSCHED.get(k, [k + 7]):
                grps += x_load(kx)
            if k == 3:
                grps += [copy_load(i) for i in range(7)]
            if k == 4:
                grps += x_load(30, "s50", True) + x_load(31, "s50", True) + [[Op("buffer_load_dword v31, v22, s[4:7], s48 offen", vm="T")]]
            for t, grp in enumerate(grps):
                put(kk * 56 + 4 * (1 + t) + 3, grp)
            if k == 7:
                put(kk * 56 + 24, [Op("", need=["CL"], site="CL")])
                n = 0
                for i in range(7):
                    for grp in copy_store(i):
                        put(kk * 56 + 24 + n * 31 // 42, grp)
                        n += 1
        need = [("W", s + 1)] + (["CS"] if s >= 6 else [])
        put(4 * BPOS, [Op("", need=need, site=("B", head, s % 4)), Op("s_barrier")])
        for j, grp in enumerate(g1_wdma(s + 3)):
            put(4 * BPOS + 2 + 2 * j, grp)
        return weave(mf, fill)

    def G(i, tt):
        return ACC1 + 32 * i + 4 * tt

    def U(i, tt):
        return ACC1 + 32 * i + 16 + 4 * tt

    def burstA(i):
        o = []
        for tt in range(4):
            for p in (0, 2):
                t = 20 + 2 * ((2 * tt + (p >> 1)) & 3)
                o.append(Op(f"v_pk_fma_f32 {vr(t,2)}, {vr(G(i,tt)+p,2)}, {vr(G(i,tt)+p,2)}, v[18:19] op_sel_hi:[1,1,0]"))
                o.append(Op(f"v_pk_mul_f32 {vr(U(i,tt)+p,2)}, {vr(G(i,tt)+p,2)}, {vr(U(i,tt)+p,2)}"))
                o.append(Op(f"v_pk_mul_f32 {vr(G(i,tt)+p,2)}, {vr(t,2)}, {vr(G(i,tt)+p,2)}"))
        return o

    def exps(i):
        return [Op(f"v_exp_f32 v{G(i,tt)+r}, -v{G(i,tt)+r}") for tt in range(4) for r in range(4)]

    def burstB(i):
        return [Op(f"v_pk_add_f32 {vr(G(i,tt)+p,2)}, {vr(G(i,tt)+p,2)}, 1.0 op_sel_hi:[1,0]") for tt in range(4) for p in (0, 2)]

    def rcps(i):
        return [Op(f"v_rcp_f32 v{G(i,tt)+r}, v{G(i,tt)+r}") for tt in range(4) for r in range(4)]

    def burstC(i):
        return [Op(f"v_pk_mul_f32 {vr(U(i,tt)+p,2)}, {vr(U(i,tt)+p,2)}, {vr(G(i,tt)+p,2)}") for tt in range(4) for p in (0, 2)]

    def cvts(i):
        gs = []
        for tt in range(4):
            if i < 6:
                dst = G(i & ~1, tt) + 2 * (i & 1)
            else:
                dst = G(6, tt & ~1) + 2 * (tt & 1)
            gs.append([Op(f"v_cvt_pk_bf16_f32 v{dst}, v{U(i,tt)}, v{U(i,tt)+1}")])
            g = [Op(f"v_cvt_pk_bf16_f32 v{dst+1}, v{U(i,tt)+2}, v{U(i,tt)+3}")]
            if i < 6 and (i & 1):
                ip = i >> 1
                so_ = [["s44", "s44", "s45"], ["s46", "s46", "s47"]][tt >> 1][ip]
                im = (tt & 1) * 1024 + (2048 if ip == 1 else 0)
                g.append(Op(f"buffer_store_dwordx4 {vr(G(i&~1,tt),4)}, v{VX}, s[12:15], {so_} offen offset:{im} {SC1}", vm="ST"))
            if i == 6 and (tt & 1):
                so_ = ["s50", "s51"][tt >> 1]
                g.append(Op(f"buffer_store_dwordx4 {vr(G(6,tt&~1),4)}, v{VX}, s[12:15], {so_} offen {SC1}", vm="ST"))
            gs.append(g)
        return gs

    def g1_final():
        mf, fill = [], {}

        def put(i, ops):
            fill.setdefault(i, []).extend(ops)
        setup = """s_lshl_b32 s44, s31, 3
        s_lshl_b32 s45, s3, 1
        s_add_u32 s44, s44, s45
        s_mul_i32 s44, s44, 229376
        s_lshr_b32 s45, s32, 1
        s_mul_i32 s45, s45, 14336
        s_add_u32 s44, s44, s45
        s_and_b32 s46, s32, 1
        s_lshl_b32 s47, s46, 10
        s_add_u32 s50, s44, s47
        s_add_u32 s50, s50, 12288
        s_add_u32 s51, s50, 229376
        s_mul_i32 s46, s46, 6144
        s_add_u32 s44, s44, s46
        s_add_u32 s45, s44, 4096
        s_add_u32 s46, s44, 229376
        s_add_u32 s47, s45, 229376""".split("\n")
        for n, l in enumerate(setup):
            put(3 + 2 * n, [Op(l.strip())])
        put(40, [Op(f"v_mov_b32 v18, {f2u(KC):#x}")])
        seen = set()
        fi = 24 * 14
        for i in range(7):
            base = len(mf)
            for n in range(len(WIN[i])):
                k, j = seq[fi]
                if k not in seen:
                    seen.add(k)
                    put(len(mf), [Op("", need=[("X", k)], site=("XF", k))])
                frag_group(fi, mf, put)
                fi += 1
            L = len(mf) - base
            if i == 0:
                put(4 * (WIN[0].index((26, 0)) - LA), [Op("", need=[("W", 13), ("W", 14)], site="BF"), Op("s_barrier")])
            else:
                p = i - 1
                if i == 1:
                    t = Asm()
                    t("s_cmp_lg_u32 s3, 0")
                    t("s_cbranch_scc1 L_f5")
                    t("s_lshl_b32 s43, s2, 2")
                    t(f"s_add_u32 s43, s43, {F5}")
                    flag_store(t, 43)
                    t("L_f5:")
                    put(base + 2, [Op(l.strip()) for l in t.lines])
                put(base + 6, burstA(p) + (burstC(p - 1) if p >= 1 else []))
                ex = exps(p)
                cv = cvts(p - 1) if p >= 1 else []
                items = []
                for n in range(16):
                    items.append([ex[n]])
                    if n % 2 == 1 and cv:
                        items.append(cv[n // 2])
                mid = L * 35 // 64
                span = mid - 9
                for n, it in enumerate(items):
                    put(base + 7 + n * span // len(items), it)
                put(base + mid, burstB(p))
                for n, o in enumerate(rcps(p)):
                    put(base + mid + 1 + n * (L - mid - 2) // 16, [o])
        tail = [Op("s_nop 7")]
        tail += burstC(5) + burstA(6)
        cv = cvts(5)
        ex = exps(6)
        for n in range(16):
            tail.append(ex[n])
            if n % 2 == 1:
                tail += cv[n // 2]
        tail += burstB(6) + rcps(6) + [Op("s_nop 0")] + burstC(6) + flat(cvts(6))
        return weave(mf, fill) + tail

    pro = [Op(None, vm=("W", s)) for s in (0, 1, 2, 15)]
    for k in range(2):
        pro += flat(x_load(k))
    pro += [Op("s_mov_b32 s43, 0")]
    for fi in range(LA):
        pro += w_read(fi)
    stages = [g1_stage(s) for s in range(12)]
    fin = g1_final()
    vmn = resolve_vm(pro + flat(stages) + fin)
    emit(a, pro, vmn)
    for s in range(4):
        emit(a, stages[s], vmn)
        if OPT.get("g1st") and s in (0, 1, 3):
            stamp(a, {0: 60, 1: 62, 3: 64}[s])
    a("L_g1_loop:")
    for s in range(4, 8):
        emit(a, stages[s], vmn)
    a("s_add_u32 s43, s43, 1")
    a("s_cmp_lt_u32 s43, 2")
    a("s_cbranch_scc1 L_g1_loop")
    stamp(a, 68)
    emit(a, fin, vmn)
    stamp(a, 70)

    ACC2, HA, WA2, RES, VW2, VL2 = 64, 96, 208, 240, 18, 32
    LA2 = 6
    a(f"""
    s_load_dwordx2 s[46:47], s[0:1], {KA_OUT}
    s_lshl_b32 s45, s34, 7
    v_add_u32 v{VW2}, s42, v2
    v_add_u32 v{VW2+1}, 4096, v{VW2}
    """)
    a("v_lshrrev_b32 v3, 2, v0")
    a("v_lshlrev_b32 v3, 7, v3")
    a("v_and_b32 v4, 1, v0")
    a("v_lshl_add_u32 v3, v4, 3, v3")
    a("v_bfe_u32 v4, v0, 3, 2")
    a("v_lshlrev_b32 v4, 1, v4")
    a("v_bfe_u32 v5, v0, 1, 1")
    a("v_or_b32 v4, v4, v5")
    for i in range(4):
        a(f"v_xor_b32 v5, {2*i}, v4")
        a(f"v_lshl_add_u32 v{VL2+i}, v5, 4, v3")
        a(f"v_add_u32 v{VL2+4+i}, {2*STG}, v{VL2+i}")
    a("s_lshl_b32 s44, s33, 2")
    a("s_add_u32 s44, s44, s3")
    a("s_mul_i32 s41, s44, 229376")
    a("s_lshl_b32 s44, s44, 16")
    a("s_add_u32 s44, s44, s45")
    a("v_and_b32 v3, 15, v0")
    a("v_lshlrev_b32 v3, 11, v3")
    a("v_add_u32 v3, s44, v3")
    a("v_lshrrev_b32 v4, 4, v0")
    a("v_lshl_add_u32 v40, v4, 3, v3")
    a("v_and_b32 v5, 1, v4")
    a("v_lshlrev_b32 v5, 1, v5")
    a("v_lshrrev_b32 v4, 1, v4")
    a("v_or_b32 v4, v4, v5")
    a("v_lshl_add_u32 v41, v4, 4, v3")
    srd(a, 16, 28, WS_X1, MB4, soff=57)
    a("s_mul_i32 s40, s34, 458752")
    a(f"s_movk_i32 s49, {F5}")
    a("s_mov_b32 s48, 0x8000")
    a(f"s_add_u32 s52, s53, {F3}")
    a("s_lshl_b32 s54, s32, 2")
    a("s_add_u32 s43, s52, s54")
    for i in range(32):
        a(f"v_mov_b32 v{ACC2+i}, 0")
    a("s_waitcnt lgkmcnt(0)")
    a(f"s_add_u32 s8, s28, {WS_X2:#x}")
    a("s_addc_u32 s9, s29, 0")
    a("s_cmp_lg_u32 s35, 0")
    a("s_cselect_b32 s8, s46, s8")
    a("s_cselect_b32 s9, s47, s9")
    a(f"s_mov_b32 s10, {MB4:#x}")
    a("s_mov_b32 s11, 0x00020000")
    a("s_cmp_lg_u32 s3, 2")
    a("s_cbranch_scc1 L_p3a")
    a("v_mov_b32 v3, v2")
    poll(a, 49, wide=True)
    a("L_p3a:")
    a("s_waitcnt vmcnt(0)")
    a("s_barrier")
    stamp(a, 72)
    a("s_cmp_lg_u32 s3, 0")
    a("s_cbranch_scc1 L_p3w")
    flag_store(a, 43)
    a("v_and_b32 v3, 31, v0")
    a("v_lshlrev_b32 v3, 2, v3")
    poll(a, 52)
    a("L_p3w:")

    def w2_dma(s):
        slot = s % 4
        g = []
        for j in range(7):
            grp = []
            if j in (0, 4):
                grp.append(Op(f"s_add_u32 m0, s42, {slot*STG + (4096 if j == 4 else 0)}"))
                grp.append(Op("s_nop 0"))
            grp.append(Op(f"buffer_load_dwordx4 v{VW2+(j>>2)}, s[20:23], s40 offen offset:{1024*(j&3)} {SC1} lds", vm=("W", s)))
            if j == 6:
                grp.append(Op(f"s_add_u32 s40, s40, {STG}"))
            g.append(grp)
        return g

    def h_load(k):
        g = []
        for t in range(2):
            grp = [Op(f"buffer_load_dwordx4 {vr(HA+8*(k%14)+4*t,4)}, v{VX}, s[12:15], s41 offen offset:{1024*t} {SC1}", vm=("H", k))]
            if t == 1:
                grp.append(Op("s_add_u32 s41, s41, 2048"))
            g.append(grp)
        return g

    ROWS = [(0, 16), (32, 48), (64, 80), (112, 128), (144, 160), (176, 192), (96, 208)]

    def w2_read(fi):
        s, rem = divmod(fi, 28)
        sg, i = divmod(rem, 4)
        slot = s % 4
        reg = WA2 + 4 * (fi % 8)
        return [Op(f"ds_read_b64_tr_b16 {vr(reg+2*h,2)}, v{VL2+4*(slot>>1)+i} offset:{(slot&1)*STG + ROWS[sg][h]*128}") for h in range(2)]

    def g2_stage(s):
        mf, fill = [], {}

        def put(i, ops):
            fill.setdefault(i, []).extend(ops)
        tail = s >= NST - 4
        for sg in range(7):
            k = 7 * s + sg
            put(len(mf), [Op("", need=[("H", k)], site=("H", s if tail else s % 4, sg))])
            if sg == 6:
                r = HA + 8 * (k % 14)
                put(len(mf), [Op(f"v_swap_b32 v{r+2}, v{r+4}"), Op(f"v_swap_b32 v{r+3}, v{r+5}"), Op("s_nop 0")])
            for i in range(4):
                fi = s * 28 + sg * 4 + i
                i0 = len(mf)
                nrem = min(LA2, NST * 28 - fi) - 1
                put(i0, [Op(f"s_waitcnt lgkmcnt({2*nrem})")])
                if fi + LA2 < NST * 28:
                    put(i0 + 1, w2_read(fi + LA2))
                for t in range(2):
                    acc = ACC2 + 8 * i + 4 * t
                    mf.append(Op(f"v_mfma_f32_16x16x32_bf16 {vr(acc,4)}, {vr(WA2+4*(fi%8),4)}, {vr(HA+8*(k%14)+4*t,4)}, {vr(acc,4)}"))
            if k + 13 < 7 * NST:
                for t, grp in enumerate(h_load(k + 13)):
                    put(sg * 8 + 2 + 2 * t, grp)
        if s + 1 < NST:
            put(2 * 18, [Op("", need=[("W", s + 1)], site=("B", s if tail else s % 4)), Op("s_barrier")])
            if s + 3 < NST:
                for j, grp in enumerate(w2_dma(s + 3)):
                    put(2 * (19 + j) + 1, grp)
        return weave(mf, fill)

    pro = flat(w2_dma(0))
    for tt in range(2):
        for i in range(4):
            pro.append(Op(f"buffer_load_dwordx2 {vr(RES+8*tt+2*i,2)}, v40, s[16:19], {'s48' if tt else '0'} offen offset:{32*i} {SC1}", vm="R"))
    pro += flat(w2_dma(1)) + flat(w2_dma(2))
    pro += [Op("s_barrier")]
    if OPT.get("stamp"):
        t = Asm(); stamp(t, 74)
        pro += [Op(l.strip()) for l in t.lines]
    for k in range(13):
        pro += flat(h_load(k))
    pro += [Op("s_mov_b32 s43, 0")]
    pro += [Op("", need=[("W", 0)], site="P"), Op("s_barrier")]
    for fi in range(LA2):
        pro += w2_read(fi)
    stages = [g2_stage(s) for s in range(NST)]
    vmn = resolve_vm(pro + flat(stages))
    emit(a, pro, vmn)
    a("L_g2_loop:")
    for s in range(4):
        emit(a, stages[s], vmn)
    a("s_add_u32 s43, s43, 1")
    a("s_cmp_lt_u32 s43, 3")
    a("s_cbranch_scc1 L_g2_loop")
    for s in range(12, 16):
        emit(a, stages[s], vmn)
    a("s_mov_b32 s49, 0xffff0000")
    a(f"s_mov_b32 s50, {f2u(1.0/(SC*SC)):#x}")
    T2 = HA
    for tt in range(2):
        for i in range(4):
            r = RES + 8 * tt + 2 * i
            t = T2 + 16 * tt + 4 * i
            a(f"v_lshlrev_b32 v{t}, 16, v{r}")
            a(f"v_and_b32 v{t+1}, s49, v{r}")
            a(f"v_lshlrev_b32 v{t+2}, 16, v{r+1}")
            a(f"v_and_b32 v{t+3}, s49, v{r+1}")
    O2 = HA + 32
    for tt in range(2):
        for i in range(4):
            t = T2 + 16 * tt + 4 * i
            acc = ACC2 + 8 * i + 4 * tt
            a(f"v_pk_fma_f32 {vr(t,2)}, {vr(acc,2)}, s[50:51], {vr(t,2)} op_sel_hi:[1,0,1]")
            a(f"v_pk_fma_f32 {vr(t+2,2)}, {vr(acc+2,2)}, s[50:51], {vr(t+2,2)} op_sel_hi:[1,0,1]")
            a(f"v_cvt_pk_bf16_f32 v{O2+8*tt+2*i}, v{t}, v{t+1}")
            a(f"v_cvt_pk_bf16_f32 v{O2+8*tt+2*i+1}, v{t+2}, v{t+3}")
    a("s_nop 1")
    for tt in range(2):
        for pr in range(2):
            o = O2 + 8 * tt + 4 * pr
            a(f"v_permlane16_swap_b32 v{o}, v{o+2}")
            a(f"v_permlane16_swap_b32 v{o+1}, v{o+3}")
    a("s_nop 1")
    for tt in range(2):
        for pr in range(2):
            o = O2 + 8 * tt + 4 * pr
            a(f"buffer_store_dwordx4 {vr(o,4)}, v41, s[8:11], {'s48' if tt else '0'} offen offset:{64*pr} {SC1}")
    a("s_cmp_lg_u32 s35, 0")
    a("s_cbranch_scc1 L_fin")
    if OPT.get("stamp"):
        for i in range(16):
            a(f"s_mov_b32 s{76+i}, s{60+i}")
    a("s_mov_b32 s35, 1")
    a("s_lshl_b32 s52, s31, 7")
    a(f"s_add_u32 s52, s52, {F4}")
    a("s_lshl_b32 s54, s32, 2")
    a("s_add_u32 s43, s52, s54")
    a("s_and_b32 s54, s33, 1")
    a("s_lshl_b32 s54, s54, 5")
    a("s_add_u32 s52, s52, s54")
    a("s_waitcnt vmcnt(0)")
    a("s_barrier")
    a("s_cmp_lg_u32 s3, 0")
    a("s_cbranch_scc1 L_layer")
    flag_store(a, 43)
    a("v_and_b32 v3, 7, v0")
    a("v_lshlrev_b32 v3, 2, v3")
    a("v_and_b32 v5, 8, v0")
    a("v_lshl_add_u32 v3, v5, 3, v3")
    poll(a, 52)
    a("s_branch L_layer")
    a("L_fin:")
    if OPT.get("stamp"):
        a("s_waitcnt vmcnt(0)")
        a("s_memrealtime s[58:59]")
        srd(a, 4, 28, WS_DBG, 0x200000)
        a("s_lshl_b32 s44, s2, 2")
        a("s_add_u32 s44, s44, s3")
        a("s_lshl_b32 s44, s44, 8")
        a("v_mov_b32 v1, s44")
        a("s_waitcnt lgkmcnt(0)")
        for i in range(42):
            a(f"v_mov_b32 v3, s{60+i}")
            a(f"buffer_store_dword v3, v1, s[4:7], 0 offen offset:{4*i}")
        a("v_mov_b32 v3, s58")
        a(f"buffer_store_dword v3, v1, s[4:7], 0 offen offset:{4*42}")
    a("L_end:")
    a("s_endpgm")
    body = a.text()
    head = f"""; interleave_layers: H3 ssm-conv + GEGLU FFN (x2), gfx950, one persistent launch (generated by my dev/gen2.py).
; @launch grid=(256,1,1) block=(256,1,1) lds={LDS_TOTAL}
.amdgcn_target "amdgcn-amd-amdhsa--gfx950"
.text
"""
    desc = f""".section .rodata,"a"
.p2align 6
.amdhsa_kernel {NAME}
  .amdhsa_next_free_vgpr 512
  .amdhsa_next_free_sgpr {102 if OPT.get('stamp') else 64}
  .amdhsa_accum_offset 256
  .amdhsa_group_segment_fixed_size 0
  .amdhsa_kernarg_size 104
  .amdhsa_user_sgpr_count 2
  .amdhsa_user_sgpr_kernarg_segment_ptr 1
  .amdhsa_system_sgpr_workgroup_id_x 1
.end_amdhsa_kernel
"""
    return head + body + desc


if __name__ == "__main__":
    path = sys.argv[1] if len(sys.argv) > 1 else "interleave_layers__ssm_conv_h3__geglu_ffn__prompt.s"
    open(path, "w").write(build())
    print("wrote", path)
```
